```python
import torch

def _softmax(x, axis=-1):
    return torch.softmax(x, dim=axis)
def _gelu(x):
    return torch.nn.functional.gelu(x, approximate="tanh")
def _silu(x):
    return torch.nn.functional.silu(x)
def _sigmoid(x):
    return torch.sigmoid(x)
def _layernorm(x, axis=-1, eps=1e-5):
    m = x.mean(dim=axis, keepdim=True)
    v = x.var(dim=axis, keepdim=True, unbiased=False)
    return (x - m) / torch.sqrt(v + eps)
def _scatter_add(tgt, idx, src, axis=0):
    return tgt.clone().index_add_(axis, idx, src)
def _segment_sum(src, seg, n):
    out = torch.zeros((n,) + src.shape[1:], dtype=src.dtype)
    return out.index_add_(0, seg, src)
def _pad(x, pw):
    flat = tuple(v for pair in reversed(pw) for v in pair)
    return torch.nn.functional.pad(x, flat)

kernel_name = 'parallel_sum__ssm_conv_s5__glu_gated_swiglu__prompt'

def setup_inputs():

    _w = (lambda a: (lambda t: t.to(torch.bfloat16) if t.is_floating_point() else t)(torch.as_tensor(a)))
    def _A_setup():
        B, S, D = 1, 2048, 640
        P = D
        Lambda_re = -0.5 * (lambda _x: torch.exp(torch.as_tensor(_x)))((lambda *s: torch.randn(*s, dtype=torch.bfloat16) * 0.2)(P))
        Lambda_im = (lambda *s: torch.randn(*s, dtype=torch.bfloat16) * 0.8)(P) * 1.0
        B_re = (lambda *s: torch.randn(*s, dtype=torch.bfloat16) * 0.2)(P, D) * (D ** -0.5)
        B_im = (lambda *s: torch.randn(*s, dtype=torch.bfloat16) * 0.2)(P, D) * (D ** -0.5)
        C_re = (lambda *s: torch.randn(*s, dtype=torch.bfloat16) * 0.2)(D, P) * (P ** -0.5)
        C_im = (lambda *s: torch.randn(*s, dtype=torch.bfloat16) * 0.2)(D, P) * (P ** -0.5)
        log_dt = (lambda *s: torch.randn(*s, dtype=torch.bfloat16) * 0.2)(P) * 0.3 - 2.0
        Dskip = (lambda *s: torch.randn(*s, dtype=torch.bfloat16) * 0.05)(D)
        return {
            "x": _w((lambda *s: torch.randn(*s, dtype=torch.bfloat16) * 0.05)(B, S, D)),
            "Lambda_re": _w(Lambda_re),
            "Lambda_im": _w(Lambda_im),
            "B_re": _w(B_re),
            "B_im": _w(B_im),
            "C_re": _w(C_re),
            "C_im": _w(C_im),
            "log_dt": _w(log_dt),
            "Dskip": _w(Dskip),
        }
    _A_in = _A_setup()

    def _B_setup():
        B, S, D, F = 1, 2048, 640, 1728
        return {
            "x": _w((lambda *s: torch.randn(*s, dtype=torch.bfloat16) * 0.05)(B, S, D)),
            "w1": _w((lambda *s: torch.randn(*s, dtype=torch.bfloat16) * 0.4)(D, F) * (2.0 / D) ** 0.5),
            "w3": _w((lambda *s: torch.randn(*s, dtype=torch.bfloat16) * 0.4)(D, F) * (2.0 / D) ** 0.5),
            "w2": _w((lambda *s: torch.randn(*s, dtype=torch.bfloat16) * 0.4)(F, D) * (2.0 / F) ** 0.5),
        }
    _B_in = _B_setup()

    return {
        "A_x": _A_in["x"],
        "A_Lambda_re": _A_in["Lambda_re"],
        "A_Lambda_im": _A_in["Lambda_im"],
        "A_B_re": _A_in["B_re"],
        "A_B_im": _A_in["B_im"],
        "A_C_re": _A_in["C_re"],
        "A_C_im": _A_in["C_im"],
        "A_log_dt": _A_in["log_dt"],
        "A_Dskip": _A_in["Dskip"],
        "B_x": _B_in["x"],
        "B_w1": _B_in["w1"],
        "B_w3": _B_in["w3"],
        "B_w2": _B_in["w2"],
    }

def reference(A_x, A_Lambda_re, A_Lambda_im, A_B_re, A_B_im, A_C_re, A_C_im, A_log_dt, A_Dskip, B_x, B_w1, B_w3, B_w2):
    def _A_ref(x, Lambda_re, Lambda_im, B_re, B_im, C_re, C_im, log_dt, Dskip):
        Bsz, L, H = x.shape
        Lam = Lambda_re + 1j * Lambda_im
        Bmat = B_re + 1j * B_im
        Cmat = C_re + 1j * C_im
        dt = torch.exp(log_dt)
        Lam_bar = torch.exp(dt * Lam)
        B_bar = ((Lam_bar - 1.0) / Lam)[:, None] * Bmat
        Bu = torch.einsum("bld,pd->blp", x + 0j, B_bar)
        h = torch.zeros_like(Bu[:, 0, :])
        hs = []
        for t in range(L):
            h = Lam_bar[None, :] * h + Bu[:, t, :]
            hs.append(h)
        hseq = torch.stack(hs, 1)
        y = 2.0 * torch.einsum("blp,dp->bld", hseq, Cmat).real + x * Dskip[None, None, :]
        return y

    def _B_ref(x, w1, w3, w2):
        gate = torch.einsum("bsd,df->bsf", x, w1)
        up = torch.einsum("bsd,df->bsf", x, w3)
        h = _silu(gate) * up
        out = torch.einsum("bsf,fd->bsd", h, w2)
        return out

    x = A_x
    xn = _layernorm(x, axis=-1)
    return x + _A_ref(xn, A_Lambda_re, A_Lambda_im, A_B_re, A_B_im, A_C_re, A_C_im, A_log_dt, A_Dskip) + _B_ref(xn, B_w1, B_w3, B_w2)
```

```python
import sys
from mb import *
def gen(name, kind, n):
    L = []
    a = L.append
    a(head(name))
    a("s_load_dwordx2 s[8:9], s[0:1], 0")
    a("s_mov_b32 s10, 0")
    for i in range(64): a(f"v_mov_b32 v{i+1}, 0") if i>0 else None
    a("s_waitcnt lgkmcnt(0)")
    a("s_barrier")
    a(f"L{name}_top:")
    a("s_memtime s[22:23]"); a("s_waitcnt lgkmcnt(0)")
    for i in range(n):
        if kind=="m16": a(f"v_mfma_f32_16x16x32_bf16 v[{8+4*(i%4)}:{11+4*(i%4)}], v[32:35], v[36:39], v[{8+4*(i%4)}:{11+4*(i%4)}]")
        elif kind=="m32": a(f"v_mfma_f32_32x32x16_bf16 v[8:23], v[32:35], v[36:39], v[8:23]")
        elif kind=="v4": a(f"v_add_f32 v{8+(i%8)}, v32, v33")
        elif kind=="v8": a(f"v_fma_f32 v{8+(i%8)}, v32, v33, v34")
    a("s_memtime s[34:35]"); a("s_waitcnt lgkmcnt(0)")
    a("s_sub_u32 s34, s34, s22")
    a("s_cmp_eq_u32 s10, 0"); a("s_cselect_b32 s11, s34, s11"); a("s_mov_b32 s12, s34")
    a("s_add_u32 s10, s10, 1"); a("s_cmp_lt_u32 s10, 2"); a(f"s_cbranch_scc0 L{name}_done")
    a("s_getpc_b64 s[40:41]")
    a(f"L{name}_pc:")
    a(f"s_sub_u32 s40, s40, L{name}_pc-L{name}_top"); a("s_subb_u32 s41, s41, 0"); a("s_setpc_b64 s[40:41]")
    a(f"L{name}_done:")
    a("s_lshl_b32 s3, s2, 3"); a("v_mov_b32 v2, s3")
    a("v_cmp_eq_u32 vcc, 0, v0"); a("s_and_saveexec_b64 s[42:43], vcc"); a(f"s_cbranch_execz L{name}_end")
    a("v_mov_b32 v4, s11"); a("v_mov_b32 v5, s12")
    a("global_store_dwordx2 v2, v[4:5], s[8:9]")
    a(f"L{name}_end:")
    a("s_endpgm")
    a(kd(name, vgpr=72, accum=72))
    return "\n".join(x for x in L if x)
cfgs = [("m16",512),("m16",2048),("m32",512),("v4",2048),("v8",1024),("v8",4096)]
hdr = "".join(f"; @launch kernel=k{i}_kernel grid=(256,1,1) block=(256,1,1) lds=0\n" for i,c in enumerate(cfgs))
asm = hdr + '.amdgcn_target "amdgcn-amd-amdhsa--gfx950"\n.text\n'
for i,c in enumerate(cfgs):
    asm += gen(f"k{i}_kernel", *c) + "\n"
co = build(asm, "k0_kernel", 16)
if not os.path.exists("/dev/kfd"):
    print("built"); sys.exit(0)
m = Mod(co)
S = DeviceBuffer(8192); F = DeviceBuffer(1<<30)
for i,c in enumerate(cfgs):
    for res in ("b2b","flush"):
        r=[]
        for it in range(6):
            if res=="flush": memset(F, it)
            sync()
            m.launch(f"k{i}_kernel", (256,1,1), (256,1,1), [S.ptr]+[0]*15, lds=120000)
            sync()
            s = S.to_numpy(np.uint32, (256,2)).astype(np.int64)
            r.append((s[:,0].mean(), s[:,0].max(), s[:,1].mean()))
        print(c, res, "first launch: pass1 mean/max, pass2:", [int(x) for x in r[0]], " later:", [int(x) for x in np.median(np.array(r[2:]),axis=0)], flush=True)
```

```python
import sys
from mb import *
SLOT=40960
def gen(name, NW, swz, rot, thr, share):
    L = []
    a = L.append
    a(head(name))
    a("s_load_dwordx4 s[4:7], s[0:1], 0")
    a("s_load_dwordx2 s[8:9], s[0:1], 16")
    a("s_memrealtime s[20:21]")
    a("v_lshrrev_b32 v1, 6, v0"); a("s_nop 0"); a("v_readfirstlane_b32 s15, v1"); a("v_and_b32 v1, 63, v0")
    if share=="xcd":
        a("s_and_b32 s3, s2, 7"); a("s_lshl_b32 s3, s3, 5"); a("s_lshr_b32 s10, s2, 3"); a("s_add_u32 s3, s3, s10")
    else:
        a("s_mov_b32 s3, s2")
    a("s_lshr_b32 s10, s3, 3"); a("s_and_b32 s11, s3, 7")
    a("s_min_u32 s10, s10, 26")
    a("v_lshrrev_b32 v5, 3, v1"); a("v_and_b32 v6, 7, v1")
    if swz==1: a("v_and_b32 v7, 2, v5"); a("v_xor_b32 v6, v6, v7")
    if swz==2: a("v_xor_b32 v6, v6, v5")
    a("v_mul_u32_u24 v5, 3456, v5"); a("v_lshl_add_u32 v5, v6, 4, v5")
    a("s_waitcnt lgkmcnt(0)")
    a("s_memrealtime s[22:23]")
    for r,p in ((24,4),(28,6)):
        a(f"s_mov_b32 s{r}, s{p}"); a(f"s_mov_b32 s{r+1}, s{p+1}"); a(f"s_mov_b32 s{r+2}, {640*3456}"); a(f"s_mov_b32 s{r+3}, 0x20000")
    per = 80//NW
    a("s_lshl_b32 s16, s10, 7")
    a(f"s_mul_i32 s17, s11, {10 if rot else 0}");
    a(f"s_and_b32 s17, s17, {0xffffffff ^ (NW-1)}")
    a("s_add_u32 s17, s17, s15")
    a("s_mov_b32 s12, 0")
    a(f"L{name}_l:")
    a(f"s_mul_i32 s18, s17, {8*3456}"); a("s_add_u32 s18, s18, s16"); a("s_lshl_b32 s19, s17, 11")
    a("s_mov_b32 m0, s19"); a("s_nop 0")
    a("buffer_load_dwordx4 v5, s[24:27], s18 offen lds")
    a("s_add_u32 m0, s19, 1024"); a("s_nop 0")
    a("buffer_load_dwordx4 v5, s[28:31], s18 offen lds")
    if thr: a(f"s_waitcnt vmcnt({thr})")
    a(f"s_add_u32 s17, s17, {NW}"); a("s_cmp_ge_u32 s17, 80"); a("s_cselect_b32 s18, 80, 0"); a("s_sub_u32 s17, s17, s18")
    a("s_add_u32 s12, s12, 1"); a(f"s_cmp_lt_u32 s12, {per}"); a(f"s_cbranch_scc1 L{name}_l")
    a("s_memrealtime s[34:35]")
    a("s_waitcnt vmcnt(0)"); a("s_barrier")
    a("s_memrealtime s[36:37]"); a("s_waitcnt lgkmcnt(0)")
    a("s_lshl_b32 s3, s2, 4"); a("v_mov_b32 v9, s3")
    a("v_cmp_eq_u32 vcc, 0, v0"); a("s_and_saveexec_b64 s[40:41], vcc"); a(f"s_cbranch_execz L{name}_end")
    a("v_mov_b32 v12, s20"); a("v_mov_b32 v13, s22"); a("v_mov_b32 v14, s34"); a("v_mov_b32 v15, s36")
    a("global_store_dwordx4 v9, v[12:15], s[8:9]")
    a(f"L{name}_end:")
    a("s_endpgm")
    a(kd(name, vgpr=512, accum=256))
    return "\n".join(x for x in L if x)
cfgs = [(2,1,0,0,"xcd"),(4,1,0,0,"xcd"),(4,0,0,0,"xcd"),(4,2,0,0,"xcd"),(4,1,1,0,"xcd"),(2,1,1,0,"xcd"),(4,1,1,8,"xcd"),(4,1,0,0,"spread"),(4,1,1,0,"spread"),(1,1,1,0,"xcd")]
hdr = "".join(f"; @launch kernel=k{i}_kernel grid=(256,1,1) block=({c[0]*64},1,1) lds=0\n" for i,c in enumerate(cfgs))
asm = hdr + '.amdgcn_target "amdgcn-amd-amdhsa--gfx950"\n.text\n'
for i,c in enumerate(cfgs):
    asm += gen(f"k{i}_kernel", *c) + "\n"
co = build(asm, "k0_kernel", 16)
if not os.path.exists("/dev/kfd"):
    print("built"); sys.exit(0)
m = Mod(co)
A = DeviceBuffer(640*3456); B = DeviceBuffer(640*3456); S = DeviceBuffer(8192); F = DeviceBuffer(1<<30)
memset(A,1); memset(B,2)
for i,c in enumerate(cfgs):
    for res in ("b2b","mall","cold"):
        r=[]
        for it in range(7):
            if res=="mall": memset(F, it, 64<<20)
            if res=="cold": memset(F, it)
            sync()
            m.launch(f"k{i}_kernel", (256,1,1), (c[0]*64,1,1), [A.ptr,B.ptr,S.ptr]+[0]*13, lds=163840)
            sync()
            s = S.to_numpy(np.uint32, (256,4)).astype(np.int64)
            t0=s[:,0].min()
            r.append(((s[:,0].max()-t0)*.01, np.median(s[:,1]-s[:,0])*.01, np.median(s[:,2]-s[:,1])*.01, np.median(s[:,3]-s[:,1])*.01, (s[:,3].max()-t0)*.01))
        r=np.median(np.array(r[2:]),axis=0)
        print(f"NW,swz,rot,thr,share={c} {res:5s} skew={r[0]:.2f} kernarg={r[1]:.2f} issue={r[2]:.2f} landed={r[3]:.2f} end={r[4]:.2f}", flush=True)
```

```python
import sys
from mb import *
RS=4096+128
def gen(name, mode, extra, tf="", df="", xf=""):
    NW=4
    L = []
    a = L.append
    a(head(name))
    a("s_load_dwordx4 s[4:7], s[0:1], 0")
    a("s_load_dwordx4 s[8:11], s[0:1], 16")
    a("s_memrealtime s[20:21]")
    a("v_lshrrev_b32 v1, 6, v0"); a("s_nop 0"); a("v_readfirstlane_b32 s15, v1"); a("v_and_b32 v1, 63, v0")
    a("s_and_b32 s3, s2, 7"); a("s_lshl_b32 s3, s3, 5"); a("s_lshr_b32 s12, s2, 3"); a("s_add_u32 s3, s3, s12")
    a("s_lshr_b32 s12, s3, 3"); a("s_and_b32 s13, s3, 7")
    a("v_lshrrev_b32 v5, 3, v1"); a("v_and_b32 v6, 7, v1")
    a(f"v_mul_u32_u24 v5, {RS}, v5"); a("v_lshl_add_u32 v5, v6, 4, v5")
    a("s_waitcnt lgkmcnt(0)")
    a("s_memrealtime s[22:23]")
    for r,p in ((24,4),(28,6)):
        a(f"s_mov_b32 s{r}, s{p}"); a(f"s_mov_b32 s{r+1}, s{p+1}"); a(f"s_mov_b32 s{r+2}, {640*RS}"); a(f"s_mov_b32 s{r+3}, 0x20000")
    a("s_lshl_b32 s16, s12, 7")
    def xload():
        a("s_mov_b32 s32, s10"); a("s_mov_b32 s33, s11"); a(f"s_mov_b32 s34, {256*10240}"); a("s_mov_b32 s35, 0x20000")
        a("s_mul_i32 s18, s2, 10240"); a("v_lshlrev_b32 v8, 3, v0")
        for u in range(5):
            a(f"buffer_load_dwordx2 v[{20+2*u}:{21+2*u}], v8, s[32:35], s18 offen {xf}"); a("s_add_u32 s18, s18, 2048")
    if extra=="xfirst": xload()
    if mode=="touch":
        a("s_bitcmp1_b32 s15, 0"); a("s_cselect_b32 s36, s28, s24"); a("s_cselect_b32 s37, s29, s25"); a("s_mov_b32 s38, s26"); a("s_mov_b32 s39, 0x20000")
        a("v_min_u32 v7, 39, v1"); a(f"v_mul_u32_u24 v7, {8*RS}, v7")
        a("s_lshr_b32 s17, s15, 1"); a("s_mul_i32 s17, s17, 320"); a("s_add_u32 s17, s17, s13"); a(f"s_mul_i32 s17, s17, {RS}"); a("s_add_u32 s17, s17, s16")
        a(f"buffer_load_dword v9, v7, s[36:39], s17 offen {tf}")
    if mode.startswith("sc"):
        a("s_bitcmp1_b32 s15, 0"); a("s_cselect_b32 s36, s6, s4"); a("s_cselect_b32 s37, s7, s5")
        a("s_lshr_b32 s17, s15, 1"); a("s_lshl_b32 s17, s17, 3"); a("s_add_u32 s17, s17, s13"); a(f"s_mul_i32 s17, s17, {RS}"); a("s_add_u32 s17, s17, s16")
        a("s_add_u32 s36, s36, s17"); a("s_addc_u32 s37, s37, 0")
        for i in range(40):
            if i and i % 15 == 0:
                a(f"s_add_u32 s36, s36, {15*16*RS}"); a("s_addc_u32 s37, s37, 0")
            a(f"s_load_dword s44, s[36:37], {(i%15)*16*RS}")
            if mode=="sc2": a(f"s_load_dword s45, s[36:37], {(i%15)*16*RS+64}")
    rot = mode=="rot"
    a(f"s_mul_i32 s17, s13, {10 if rot else 0}"); a(f"s_and_b32 s17, s17, {0xffffffff ^ (NW-1)}"); a("s_add_u32 s17, s17, s15")
    a("s_mov_b32 s14, 0")
    a(f"L{name}_l:")
    a(f"s_mul_i32 s18, s17, {8*RS}"); a("s_add_u32 s18, s18, s16"); a("s_lshl_b32 s19, s17, 11")
    a("s_mov_b32 m0, s19"); a("s_nop 0")
    a(f"buffer_load_dwordx4 v5, s[24:27], s18 offen {df} lds")
    a("s_add_u32 m0, s19, 1024"); a("s_nop 0")
    a(f"buffer_load_dwordx4 v5, s[28:31], s18 offen {df} lds")
    a(f"s_add_u32 s17, s17, {NW}"); a("s_cmp_ge_u32 s17, 80"); a("s_cselect_b32 s18, 80, 0"); a("s_sub_u32 s17, s17, s18")
    a("s_add_u32 s14, s14, 1"); a(f"s_cmp_lt_u32 s14, 20"); a(f"s_cbranch_scc1 L{name}_l")
    if extra=="xlast": xload(); a("s_waitcnt vmcnt(5)")
    else: a("s_waitcnt vmcnt(0)")
    a("s_barrier")
    a("s_memrealtime s[40:41]")
    a("s_waitcnt vmcnt(0)"); a("s_barrier")
    a("s_memrealtime s[42:43]"); a("s_waitcnt lgkmcnt(0)")
    a("s_lshl_b32 s3, s2, 4"); a("v_mov_b32 v9, s3")
    a("v_cmp_eq_u32 vcc, 0, v0"); a("s_and_saveexec_b64 s[46:47], vcc"); a(f"s_cbranch_execz L{name}_end")
    a("v_mov_b32 v12, s20"); a("v_mov_b32 v13, s22"); a("v_mov_b32 v14, s40"); a("v_mov_b32 v15, s42")
    a("global_store_dwordx4 v9, v[12:15], s[8:9]")
    a(f"L{name}_end:")
    a("s_endpgm")
    a(kd(name, vgpr=512, accum=256))
    return "\n".join(x for x in L if x)
cfgs = [("touch","xfirst","","",""),("touch","xfirst","nt","",""),("touch","xfirst","nt","nt",""),("touch","xfirst","nt","","nt"),("rot","xfirst","","nt",""),("rot","xfirst","","nt","nt"),("none","xfirst","","nt","nt"),("touch","xfirst","sc1","",""),("touch","xfirst","sc0 sc1","",""),("touch","xfirst","sc0 sc1 nt","","sc0 sc1 nt")]
hdr = "".join(f"; @launch kernel=k{i}_kernel grid=(256,1,1) block=(256,1,1) lds=0\n" for i,c in enumerate(cfgs))
asm = hdr + '.amdgcn_target "amdgcn-amd-amdhsa--gfx950"\n.text\n'
for i,c in enumerate(cfgs):
    asm += gen(f"k{i}_kernel", *c) + "\n"
co = build(asm, "k0_kernel", 16)
if not os.path.exists("/dev/kfd"):
    print("built"); sys.exit(0)
m = Mod(co)
A = DeviceBuffer(641*RS+65536*16); B = DeviceBuffer(641*RS+65536*16); S = DeviceBuffer(8192); X = DeviceBuffer(256*10240); F = DeviceBuffer(1<<30)
memset(A,1); memset(B,2)
for i,c in enumerate(cfgs):
    for res in ("mall","cold"):
        r=[]
        for it in range(7):
            if res=="mall": memset(F, it, 64<<20)
            if res=="cold": memset(F, it)
            sync()
            m.launch(f"k{i}_kernel", (256,1,1), (256,1,1), [A.ptr,B.ptr,S.ptr,X.ptr]+[0]*12, lds=163840)
            sync()
            s = S.to_numpy(np.uint32, (256,4)).astype(np.int64)
            t0=s[:,0].min()
            r.append(((s[:,0].max()-t0)*.01, np.median(s[:,2]-s[:,1])*.01, np.median(s[:,3]-s[:,1])*.01, (s[:,2].max()-t0)*.01))
        r=np.median(np.array(r[2:]),axis=0)
        print(f"{c} {res:5s} skew={r[0]:.2f} W landed={r[1]:.2f} all landed={r[2]:.2f} Wend(max abs)={r[3]:.2f}", flush=True)
```

```python
import re

NAME = "parallel_sum__ssm_conv_s5__glu_gated_swiglu__prompt"

KA_X, KA_LRE, KA_LIM, KA_BRE, KA_BIM, KA_CRE, KA_CIM, KA_LDT, KA_DSK = 0, 8, 16, 24, 32, 40, 48, 56, 64
KA_W1, KA_W3, KA_W2, KA_OUT, KA_DBG, KA_WS = 80, 88, 96, 104, 112, 120

XN_OFF = 0
XN_SZ = 64 * 40 * 1024
A2_OFF = XN_OFF + XN_SZ
A2_SZ = 128 * 94 * 1024
W2P_OFF = A2_OFF + A2_SZ
W2P_SZ = 8 * 94 * 5 * 1024
AGG_OFF = W2P_OFF + W2P_SZ
AGG_SZ = 40 * 2048
P_OFF = AGG_OFF + AGG_SZ
P_SZ = 16 * 8 * 2 * 4 * 5120
FLG_OFF = P_OFF + P_SZ
F_G = 0
F0 = 128
F2 = F0 + 64 * 128
F3 = F2 + 64 * 32 * 128
F4 = F3 + 8 * 16 * 128
F5 = F4 + 1024 * 128
FLG_SZ = F5 + 1024 * 128
FST = FLG_SZ
FLG_SZ += 2048 * 8
WS_USED = FLG_OFF + FLG_SZ
STAMP_OFF = 32 << 20


class Asm:
    def __init__(self):
        self.L = []
        self.uid = 0
        self.q = []
        self.lq = []

    def __call__(self, s):
        for line in s.split("\n"):
            line = line.strip()
            if not line:
                continue
            m = re.search(r"offset:(\d+)", line)
            if m:
                off = int(m.group(1))
                if line.startswith("buffer_"):
                    assert off < 4096, line
                if line.startswith("ds_"):
                    assert off < 65536, line
            m = re.search(r"vmcnt\((\d+)\)", line)
            if m:
                assert int(m.group(1)) < 64, line
            m = re.search(r"lgkmcnt\((\d+)\)", line)
            if m:
                assert int(m.group(1)) < 16, line
            self.L.append(line)

    def vm(self, tag, s):
        self(s)
        self.q.append(tag)

    def vmwait(self, *tags, extra=""):
        last = max((i for i, t in enumerate(self.q) if t in tags), default=None)
        if last is None:
            if extra:
                self(f"s_waitcnt {extra}")
            return
        n = min(63, len(self.q) - 1 - last)
        self(f"s_waitcnt vmcnt({n}) {extra}".strip())
        del self.q[:len(self.q) - n]

    def lg(self, tag, s):
        self(s)
        self.lq.append(tag)

    def lgcount(self, *tags):
        last = max((i for i, t in enumerate(self.lq) if t in tags), default=None)
        if last is None:
            return None
        return min(15, len(self.lq) - 1 - last)

    def lgwait(self, *tags):
        n = self.lgcount(*tags)
        if n is not None:
            self(f"s_waitcnt lgkmcnt({n})")
            del self.lq[:len(self.lq) - n]

    def waitall_lg(self, *vmtags):
        self.vmwait(*vmtags, extra="lgkmcnt(0)")
        self.lq = []

    def item(self, x):
        if isinstance(x, str):
            self(x)
        elif isinstance(x, list):
            for y in x:
                self.item(y)
        elif callable(x):
            x()
        elif x[0] == "vm":
            self.vm(x[1], x[2])
        elif x[0] == "wait":
            self.vmwait(*x[1:])
        elif x[0] == "lg":
            self.lg(x[1], x[2])
        elif x[0] == "lgwait":
            self.lgwait(*x[1:])
        else:
            raise ValueError(x)

    def label(self, base):
        self.uid += 1
        return f"L{base}_{self.uid}"

    def text(self):
        out = []
        for l in self.L:
            if l.endswith(":") or l.startswith("."):
                out.append(l)
            else:
                out.append("    " + l)
        return "\n".join(out) + "\n"

    def srd(self, d, base, nbytes, add=0):
        if add:
            self(f"s_add_u32 s{d}, s{base}, {add}")
            self(f"s_addc_u32 s{d+1}, s{base+1}, 0")
        else:
            self(f"s_mov_b32 s{d}, s{base}")
            self(f"s_mov_b32 s{d+1}, s{base+1}")
        self(f"s_mov_b32 s{d+2}, {nbytes}")
        self(f"s_mov_b32 s{d+3}, 0x20000")


def vr(r, n, kind="v"):
    return f"{kind}[{r}:{r+n-1}]" if n > 1 else f"{kind}{r}"


def head(name):
    return f""".globl {name}
.p2align 8
.type {name},@function
{name}:
"""


def kd(name, vgpr, accum, sgpr=102):
    return f""".p2align 6
.amdhsa_kernel {name}
  .amdhsa_next_free_vgpr {vgpr}
  .amdhsa_next_free_sgpr {sgpr}
  .amdhsa_accum_offset {accum}
  .amdhsa_group_segment_fixed_size 0
  .amdhsa_kernarg_size 128
  .amdhsa_user_sgpr_count 2
  .amdhsa_user_sgpr_kernarg_segment_ptr 1
  .amdhsa_system_sgpr_workgroup_id_x 1
  .amdhsa_float_denorm_mode_32 3
.end_amdhsa_kernel
"""


HEADER = """; Kernarg layout for this problem (128 bytes, ptrs only, base s[0:1]):
"""


def stamp(a, idx, sws, on):
    if not on:
        return
    va, vb = on
    lab = a.label("stamp")
    a("s_memrealtime s[96:97]")
    a("s_waitcnt lgkmcnt(0)")
    a("s_cmp_lg_u32 s15, 0")
    a(f"s_cbranch_scc1 {lab}")
    a("s_lshl_b32 s97, s2, 6")
    a(f"s_add_u32 s97, s97, {STAMP_OFF + idx*4}")
    a(f"v_mov_b32 v{va}, s97")
    a(f"v_mov_b32 v{vb}, s96")
    a("s_mov_b64 s[98:99], exec")
    a("s_mov_b64 exec, 1")
    a(f"global_store_dword v{va}, v{vb}, s[{sws}:{sws+1}]")
    a("s_mov_b64 exec, s[98:99]")
    a(f"{lab}:")
```

```python
import re

TRANS = ("v_exp_f32", "v_log_f32", "v_rcp_f32", "v_rsq_f32", "v_sqrt_f32", "v_sin_f32", "v_cos_f32")


def regs_of(tok):
    tok = tok.strip()
    tok = re.sub(r"^-|^abs\(|\)$|^\|", "", tok).strip("|")
    m = re.fullmatch(r"([vas])(\d+)", tok)
    if m:
        return {(m.group(1), int(m.group(2)))}
    m = re.fullmatch(r"([vas])\[(\d+):(\d+)\]", tok)
    if m:
        return {(m.group(1), i) for i in range(int(m.group(2)), int(m.group(3)) + 1)}
    if tok == "vcc":
        return {("s", "vcc")}
    if tok == "exec":
        return {("s", "exec")}
    if tok == "m0":
        return {("s", "m0")}
    return set()


class I:
    def __init__(self, line):
        self.line = line
        line = line.split(";")[0].strip()
        parts = line.split(None, 1)
        self.op = parts[0]
        rest = parts[1] if len(parts) > 1 else ""
        ops = re.split(r",\s*(?![^\[]*\])", rest)
        last = ops[-1].split(None, 1) if ops else [""]
        self.mods = last[1] if len(last) > 1 else ""
        if ops:
            ops[-1] = last[0] if last else ""
        self.ops = ops
        op = self.op
        self.kind = "other"
        self.w = set()
        self.r = set()
        self.srcc = set()
        R = [regs_of(o) for o in ops]
        if op.startswith("v_mfma"):
            self.kind = "mfma"
            self.w = R[0]
            self.r = R[1] | R[2] | R[3]
            self.ab = R[1] | R[2]
            self.srcc = R[3]
            self.passes = 8 if "32x32" in op else 4
        elif op.startswith("v_"):
            self.kind = "valu"
            if op.startswith("v_cmp"):
                self.w = R[0]
                self.r = set().union(*R[1:])
            elif op.startswith("v_permlane"):
                self.w = R[0] | R[1]
                self.r = R[0] | R[1]
            elif op.startswith("v_add_co") or op.startswith("v_addc_co") or op.startswith("v_sub_co"):
                self.w = R[0] | R[1]
                self.r = set().union(*R[2:])
            else:
                self.w = R[0]
                self.r = set().union(*R[1:]) if len(R) > 1 else set()
                if op.startswith(("v_fmac", "v_dot2c", "v_writelane")):
                    self.r |= R[0]
            self.dpp = "quad_perm" in self.mods or "row_" in self.mods
            self.trans = op.replace("_e32", "").replace("_e64", "") in TRANS
            self.dot = op.startswith("v_dot")
        elif op.startswith("ds_"):
            self.kind = "ds"
            if op.startswith("ds_read") or op.startswith("ds_bpermute") or op.startswith("ds_swizzle"):
                self.w = R[0]
                self.r = set().union(*R[1:])
            else:
                self.r = set().union(*R)
        elif op.startswith(("buffer_", "global_")):
            self.kind = "vmem"
            self.lds = " lds" in (" " + self.mods) or "_lds_" in op
            if not R or op in ("buffer_wbl2", "buffer_inv"):
                pass
            elif "load" in op and not self.lds:
                self.w = R[0]
                self.r = set().union(*R[1:])
            else:
                self.r = set().union(*R)
                if "atomic" in op and "sc0" in self.mods:
                    self.w = R[0]
            self.wide_store = "store" in op and ("x4" in op or "x3" in op)
            if self.wide_store:
                self.sdata = R[0] if op.startswith("buffer_") else R[1]
        elif op.startswith("s_"):
            self.kind = "salu"
            if op.startswith(("s_cmp", "s_waitcnt", "s_barrier", "s_nop", "s_branch", "s_cbranch", "s_endpgm", "s_sleep", "s_setprio", "s_setpc")):
                self.r = set().union(*R) if R else set()
            else:
                self.w = R[0] if R else set()
                self.r = set().union(*R[1:]) if len(R) > 1 else set()
                if "saveexec" in op:
                    self.w = self.w | {("s", "exec")}
        self.states = 1
        if op == "s_nop":
            self.states = int(ops[0], 0) + 1


def need(p, c):
    n = 0
    vg = lambda s: {x for x in s if x[0] in "va"}
    sg = lambda s: {x for x in s if x[0] == "s"}
    if p.kind == "valu":
        if c.kind == "valu":
            if vg(p.w) & c.r:
                if c.dpp:
                    n = max(n, 2)
                if c.op.startswith("v_permlane"):
                    n = max(n, 2)
                if c.op.startswith(("v_readlane", "v_readfirstlane")):
                    n = max(n, 1)
                if p.trans and not c.trans:
                    n = max(n, 1)
                if "sdwa" in p.op:
                    n = max(n, 1)
            if p.dot and (vg(p.w) & (c.r | c.w)):
                if c.op != p.op:
                    n = max(n, 3)
                else:
                    srcab = set().union(*[regs_of(o) for o in c.ops[1:3]])
                    if vg(p.w) & srcab:
                        n = max(n, 3)
            if sg(p.w) & c.r:
                n = max(n, 2)
                if c.op.startswith(("v_readlane", "v_writelane")):
                    n = max(n, 4)
        if c.kind == "mfma" and (vg(p.w) & c.r):
            n = max(n, 3 if p.dot else 2)
        if c.kind in ("vmem", "ds") and p.dot and (vg(p.w) & c.r):
            n = max(n, 3)
        if c.kind == "vmem" and (sg(p.w) & c.r):
            n = max(n, 5)
        if c.kind == "salu" and (sg(p.w) & c.r):
            n = max(n, 1)
    if p.kind == "mfma":
        big = {4: 8, 8: 12}[p.passes]
        if c.kind == "mfma":
            if p.w & c.ab:
                n = max(n, big)
            if p.w & c.srcc and not (p.w == c.srcc and p.passes == c.passes):
                n = max(n, {4: 6, 8: 10}[p.passes])
        elif c.kind in ("valu", "ds", "vmem"):
            if p.w & (c.r | c.w):
                n = max(n, big)
            if c.kind == "valu" and (p.srcc & c.w):
                n = max(n, {4: 3, 8: 7}[p.passes])
    if p.kind == "salu" and ("s", "m0") in p.w and c.kind == "vmem" and c.lds:
        n = max(n, 1)
    if p.kind == "vmem" and p.wide_store and (p.sdata & c.w):
        n = max(n, 2 if c.kind == "valu" else 1)
    return n


def check_seq(seq, problems, start=0):
    for j in range(start, len(seq)):
        c = seq[j]
        dist = 0
        for i in range(j - 1, max(-1, j - 24), -1):
            p = seq[i]
            n = need(p, c)
            if n > dist:
                problems.add((p.line, c.line, n, dist))
            dist += p.states
            if dist >= 20:
                break


def check(lines):
    ins = []
    labels = {}
    for l in lines:
        l = l.strip()
        if not l or l.startswith((".", ";")):
            continue
        if l.endswith(":"):
            labels[l[:-1]] = len(ins)
            continue
        ins.append(I(l))
    problems = set()
    seg = []
    for x in ins:
        seg.append(x)
        if x.op in ("s_endpgm", "s_branch", "s_setpc_b64"):
            check_seq(seg, problems)
            seg = []
    check_seq(seg, problems)
    for k, x in enumerate(ins):
        if x.op.startswith(("s_branch", "s_cbranch")):
            t = labels.get(x.ops[0])
            if t is None:
                continue
            pre = ins[max(0, k - 24): k + 1]
            post = []
            for y in ins[t: t + 24]:
                post.append(y)
                if y.op in ("s_endpgm", "s_branch", "s_setpc_b64"):
                    break
            check_seq(pre + post, problems, start=len(pre))
    return sorted(problems)


def fix(lines, verbose=True):
    out = []
    hist = []
    nins = 0
    for l in lines:
        s = l.strip()
        if not s or s.startswith((".", ";")) or s.endswith(":"):
            out.append(l)
            continue
        c = I(s)
        dist = 0
        short = 0
        who = None
        for p in reversed(hist[-24:]):
            n = need(p, c)
            if n - dist > short:
                short = n - dist
                who = p
            dist += p.states
            if dist >= 20:
                break
        if short > 0:
            nop = f"s_nop {short-1}"
            out.append(nop)
            hist.append(I(nop))
            nins += 1
            if verbose:
                print(f"  nop {short}: [{who.line}] -> [{s}]")
        out.append(l)
        hist.append(c)
        if c.op in ("s_endpgm", "s_branch", "s_setpc_b64"):
            hist = []
    return out
```

```python
import sys, os
sys.path.insert(0, os.path.dirname(__file__))
from common import *
import hazard

DIAG = os.environ.get("DIAG") == "1"
DPPX = "quad_perm:[1,0,3,2] row_mask:0xf bank_mask:0xf"
LOG2E = 0x3fb8aa3b
NLOG2E = 0xbfb8aa3b
SLOT = 40960
OOB = 0x7ff00000
SC = "sc1"
F6 = F4
SPIN = 0x20000
TBL = 3 * SLOT + 20480

pX, pLRE, pLIM, pBRE, pBIM, pCRE, pCIM, pLDT, pDSK, pW1, pW3, pW2, pOUT, pWS = 64, 66, 68, 70, 72, 74, 76, 78, 80, 84, 86, 88, 90, 94
sXCD, sIDX, sROLE, sUNIT, sPART = 3, 4, 5, 6, 7
sHALF, sTILE, sNB = 8, 9, 10
sTAG, sW = 14, 15
rX, rA2, rFL, rWA, rWB, rWP, rT = 20, 24, 28, 32, 36, 40, 44
sB1, sB2, sBT, sB3 = 48, 49, 50, 84
sF6 = 51
sXO, sST, sFO, sWP = 53, 54, 55, 56
sPK, sPC = 57, 58
sSA, sSB, sSH, sWB, sWO = 59, 60, 61, 62, 63
sHM = 82
sG1, sA1, sA2, sA3 = 92, 93, 100, 101
BG_ROUNDS = [int(x) for x in os.environ.get("BG", "0,0,0,0,10,10,10,10,10,10").split(",")]
D2 = 4
NT_T, NT_W, NT_P = [("nt" if c == "1" else "") for c in os.environ.get("NT", "111")]
TOUCH = os.environ.get("TOUCH", "1") == "1"


def srdr(r):
    return f"s[{r}:{r+3}]"


def rne(v):
    return [f"v_cvt_pk_bf16_f32 v{v}, v{v}, v{v}", f"v_and_b32 v{v}, 0xffff0000, v{v}"]


RST = os.environ.get("RST") == "1"


def dstamp(a, idx, rnd=False):
    if not DIAG or (idx <= 5 and rnd != RST):
        return
    a("s_memrealtime s[96:97]")
    a("s_waitcnt lgkmcnt(0)")
    a(f"v_writelane_b32 v15, s96, {idx}")


def dflush(a):
    lab = a.label("dfl")
    a(f"s_cmp_lg_u32 s{sW}, {os.environ.get('DW', '0')}")
    a(f"s_cbranch_scc1 {lab}")
    a("s_lshl_b32 s97, s2, 6")
    a(f"s_add_u32 s97, s97, {STAMP_OFF}")
    a("v_lshlrev_b32 v14, 2, v1")
    a("v_add_u32 v14, s97, v14")
    a("s_mov_b64 exec, 0xffff")
    a(f"global_store_dword v14, v15, s[{pWS}:{pWS+1}]")
    a(f"{lab}:")


def spin(a, load, check, name):
    top, out = a.label(name), a.label(name + "o")
    a("s_mov_b32 s13, 0")
    a(f"{top}:")
    for x in load:
        a(x)
    a("s_add_u32 s13, s13, 1")
    a("s_waitcnt vmcnt(0)")
    for x in check:
        a(x)
    a(f"s_cmp_ge_u32 s13, {SPIN}")
    a(f"s_cbranch_scc1 {out}")
    a(f"s_cbranch_vccnz {top}")
    a(f"{out}:")


DEFERRED = []


def async_check(a, tag, load, check, name):
    slow, back = a.label(name + "s"), a.label(name + "b")
    a.vmwait(tag)
    for x in check:
        a(x)
    a(f"s_cbranch_vccnz {slow}")
    a(f"{back}:")
    DEFERRED.append((slow, back, load, check, name))


def emit_deferred(a):
    for slow, back, load, check, name in DEFERRED:
        a(f"{slow}:")
        spin(a, load, check, name + "d")
        a(f"s_branch {back}")


def bg_items(idx):
    L = []
    cur = None
    for i in idx:
        base, k = (sB1, i) if i < 50 else ((sB2, i - 50) if i < 55 else (sB3, i - 55))
        it = []
        if cur != (base, k // 4):
            cur = (base, k // 4)
            pre = f"s_add_u32 s{sBT}, s{base}, {4096*(k//4)}"
            if L:
                L[-1].append(pre)
            else:
                it.append(pre)
        it.append(("vm", ("bg", i // 5), f"buffer_load_dwordx4 a[{4*i}:{4*i+3}], v2, {srdr(rWP)}, s{sBT} offen offset:{1024*(k%4)}"))
        L.append(it)
    return L


def x_dma(tile, slot, stride, vX):
    L = []
    for u in range(10):
        it = [("vm", ("x", tile), f"buffer_load_dwordx4 v{vX}, {srdr(rX)}, s{sXO} offen offset:{128*u} lds")]
        if u < 9:
            it.append(f"s_add_u32 m0, s{sWP}, {slot*SLOT + 896*(u+1)}")
        else:
            it.append(f"s_add_u32 m0, s{sWP}, {((slot+1)%3)*SLOT}")
            it.append(f"s_add_u32 s{sXO}, s{sXO}, {stride*SLOT}")
        L.append(it)
    return L


def w_dma(half, us):
    L = []
    for u in us:
        it = []
        if u == 0:
            it.append(f"s_mov_b32 s{sWO}, s{sWB}" if half == 0 else f"s_add_u32 s{sWB}, s{sWB}, s{sSH}")
            if half == 1:
                it.append(f"s_mov_b32 s{sWO}, s{sWB}")
        elif u == 5:
            it.append(f"s_add_u32 s{sWO}, s{sWB}, s{sSB}")
        else:
            it.append(f"s_add_u32 s{sWO}, s{sWO}, s{sSA}")
        it.insert(0, f"s_add_u32 m0, s{sWP}, {half*2*SLOT + 1024*u}")
        it.append(("vm", ("w", half), f"buffer_load_dwordx4 v{24+(u&1)}, {srdr(rWA)}, s{sWO} offen {NT_W} lds"))
        it.append(f"s_add_u32 m0, s{sWP}, {half*2*SLOT + SLOT + 1024*u}")
        L.append(it)
        L.append([("vm", ("w", half), f"buffer_load_dwordx4 v{26+(u&1)}, {srdr(rWB)}, s{sWO} offen {NT_W} lds")])
    return L


def weave(a, main, side):
    n, m = len(main), len(side)
    k = 0
    for i, x in enumerate(main):
        a.item(x)
        while k < m and (k + 1) * n <= (i + 1) * m:
            a.item(side[k])
            k += 1
    while k < m:
        a.item(side[k])
        k += 1


def cost(x):
    if isinstance(x, list):
        return sum(cost(y) for y in x)
    if isinstance(x, str):
        return 2 if x.startswith(("v_exp", "v_rcp")) else 1
    if callable(x):
        return 3
    return 1


def schedule(ngaps, fixed, cap, mem, mem_range, ep, ep_range):
    gaps = [list(fixed.get(g, [])) for g in range(ngaps)]
    used = [sum(cost(x) for x in gaps[g]) for g in range(ngaps)]
    if mem:
        lo, hi = mem_range
        prev = lo
        for i, x in enumerate(mem):
            g = max(prev, lo + (i * (hi - lo + 1)) // len(mem))
            if g + 1 <= hi and used[g + 1] < used[g]:
                g += 1
            prev = g
            gaps[g].append(x)
            used[g] += cost(x)
    if ep:
        lo, hi = ep_range
        tot = sum(cost(x) for x in ep)
        c = cap
        while sum(max(0, c - used[g]) for g in range(lo, hi + 1)) < tot:
            c += 0.25
        free = sum(max(0, c - used[g]) for g in range(lo, hi + 1))
        k = 0
        done = 0
        acc = 0
        for g in range(lo, hi + 1):
            acc += max(0, c - used[g])
            target = tot * acc / max(free, 1)
            while k < len(ep) and (done + cost(ep[k]) <= target + 0.5 + (0 if g < hi else 1e9)):
                gaps[g].append(ep[k])
                used[g] += cost(ep[k])
                done += cost(ep[k])
                k += 1
        assert k == len(ep)
    return gaps


def and4(v, t):
    return [f"v_xor_b32 v{v}, v{v}, v13", f"v_xor_b32 v{v+1}, v{v+1}, v13", f"v_xor_b32 v{v+2}, v{v+2}, v13",
            f"v_xor_b32 v{v+3}, v{v+3}, v13", f"v_or3_b32 v{v}, v{v}, v{v+1}, v{v+2}", f"v_or_b32 v{v}, v{v}, v{v+3}",
            f"v_cmp_ne_u32 vcc, 0, v{v}"]


def pack_setup(a):
    a(f"s_lshl_b32 s11, s2, 2")
    a(f"s_add_u32 s11, s11, s{sW}")
    a("s_lshr_b32 s12, s11, 4")
    a("s_bfe_u32 s16, s11, 0x30001")
    a("s_and_b32 s17, s11, 1")
    a("s_mul_i32 s18, s12, 40960")
    a("s_mul_i32 s19, s16, 160")
    a("s_add_u32 s18, s18, s19")
    a("s_mul_i32 s19, s17, 96")
    a("s_add_u32 s85, s18, s19")
    a("s_mul_i32 s16, s16, 94")
    a("s_add_u32 s16, s16, s12")
    a("s_mul_i32 s16, s16, 5")
    a("s_mul_i32 s17, s17, 3")
    a("s_add_u32 s16, s16, s17")
    a("s_lshl_b32 s16, s16, 10")
    a("s_cmp_lt_u32 s12, 54")
    a(f"s_cselect_b32 s{sPK}, s16, {OOB}")
    a(f"s_mul_i32 s86, s{sW}, 5120")
    a(f"s_add_u32 s86, s86, {3*SLOT}")
    for u in range(3):
        a(f"v_add_u32 v16, {64*u}, v1")
        a("v_mul_u32_u24 v17, 171, v16")
        a("v_lshrrev_b32 v17, 10, v17")
        a(f"v_mul_u32_u24 v17, {1280-96}, v17")
        a(f"v_lshl_add_u32 v{28+u}, v16, 4, v17")
    a("v_mul_u32_u24 v31, 1280, v3")
    a("v_lshl_add_u32 v31, v4, 4, v31")
    a("v_lshrrev_b32 v16, 4, v1")
    a("v_bfe_u32 v17, v1, 2, 2")
    a("v_lshl_add_u32 v17, v16, 3, v17")
    a("v_mul_u32_u24 v17, 96, v17")
    a("v_and_b32 v18, 3, v1")
    a("v_lshl_add_u32 v17, v18, 3, v17")
    a("v_add_u32 v17, s86, v17")
    a("v_and_b32 v18, 15, v1")
    a("v_lshlrev_b32 v18, 7, v18")
    a("v_lshl_add_u32 v18, v16, 4, v18")
    a("v_add_u32 v18, s86, v18")
    a("s_add_u32 s11, s11, 224")
    a("s_and_b32 s11, s11, 1023")
    a("s_cmp_ge_u32 s11, 400")
    a(f"s_cselect_b32 s{pCRE}, s{pCIM}, s{pCRE}")
    a(f"s_cselect_b32 s{pCRE+1}, s{pCIM+1}, s{pCRE+1}")
    a("s_cselect_b32 s12, 400, 0")
    a("s_cselect_b32 s16, 74, 54")
    a("s_sub_u32 s12, s11, s12")
    a(f"s_mul_hi_u32 s17, s12, {(2**32+9)//10}")
    a("s_mul_i32 s18, s17, 10")
    a("s_sub_u32 s12, s12, s18")
    a("s_mul_i32 s18, s17, 20480")
    a("s_lshl_b32 s19, s12, 7")
    a("s_add_u32 s87, s18, s19")
    a(f"s_mul_hi_u32 s18, s17, {(2**32+4)//5}")
    a("s_mul_i32 s19, s18, 5")
    a("s_sub_u32 s17, s17, s19")
    a("s_mul_i32 s18, s18, 94")
    a("s_add_u32 s18, s18, s16")
    a("s_lshl_b32 s12, s12, 1")
    a("s_add_u32 s18, s18, s12")
    a("s_mul_i32 s18, s18, 5")
    a("s_add_u32 s18, s18, s17")
    a("s_lshl_b32 s18, s18, 10")
    a("s_cmp_lt_u32 s11, 800")
    a(f"s_cselect_b32 s{sPC}, s18, {OOB}")


def pack_loads(va, m0_after):
    L = [["s_mov_b32 m0, s86"]]
    for u in range(3):
        L.append([("vm", "pk", f"buffer_load_dwordx4 v{va+u}, {srdr(rWA)}, s85 offen {NT_P} lds"), f"s_add_u32 m0, s86, {1024*(u+1)}"])
    L.append([("vm", "pk", f"buffer_load_dwordx4 v{va+3}, {srdr(rWB)}, s87 offen {NT_P} lds"), "s_add_u32 m0, s86, 4096", "s_add_u32 s87, s87, 10240"])
    L.append([("vm", "pk", f"buffer_load_dwordx4 v{va+3}, {srdr(rWB)}, s87 offen {NT_P} lds"), m0_after])
    return L


def pack_srds(a):
    a.srd(rWA, pW2, 1728 * 1280)
    a.srd(rWB, pCRE, 640 * 1280)


def pack_finish(CR):
    L = [("wait", "pk")]
    for j in range(3):
        L.append(("lg", "pkr", f"ds_read_b64_tr_b16 a[{CR+4*j}:{CR+4*j+1}], v4 offset:{32*j}"))
        L.append(("lg", "pkr", f"ds_read_b64_tr_b16 a[{CR+4*j+2}:{CR+4*j+3}], v4 offset:{32*j+384}"))
    for e in range(2):
        L.append(("lg", "pkr", f"ds_read_b128 a[{CR+12+4*e}:{CR+15+4*e}], v5 offset:{3072+64*e}"))
    M = [("lgwait", "pkr")]
    for j in range(3):
        if j == 2:
            M.append([f"s_bitcmp1_b32 s{sW}, 0", f"s_cselect_b32 s{sPK}, {OOB}, s{sPK}"])
        M.append(("vm", "pks", f"buffer_store_dwordx4 a[{CR+4*j}:{CR+4*j+3}], v2, {srdr(rWP)}, s{sPK} offen offset:{1024*j} {SC}"))
    M.append([("vm", "pks", f"buffer_store_dwordx4 a[{CR+12}:{CR+15}], v2, {srdr(rWP)}, s{sPC} offen {SC}"),
              f"s_add_u32 s{sPC}, s{sPC}, 5120"])
    M.append(("vm", "pks", f"buffer_store_dwordx4 a[{CR+16}:{CR+19}], v2, {srdr(rWP)}, s{sPC} offen {SC}"))
    return L, M


def f6_addr(a, v):
    for x in [
        f"s_lshr_b32 s16, s{sA1}, 10", f"s_lshr_b32 s17, s{sA2}, 10", f"s_cmp_eq_u32 s{sHALF}, 0",
        "s_cselect_b32 s16, s16, s17", "s_cselect_b32 s17, 11, 1", "s_cselect_b32 s18, 64, 4",
        f"v_lshrrev_b32 v{v}, 1, v1", f"v_min_u32 v{v}, s17, v{v}", f"v_add_u32 v{v}, s16, v{v}", f"v_min_u32 v{v}, 53, v{v}",
        f"s_lshl_b32 s16, s{sNB}, 1", f"v_lshl_add_u32 v{v}, v{v}, 4, s16", "v_and_b32 v30, 1, v1", f"v_add_u32 v{v}, v{v}, v30",
        "v_subrev_u32 v30, 4, v1", "v_min_u32 v30, 24, v30", "v_mul_u32_u24 v31, 52, v30", "v_lshrrev_b32 v31, 8, v31",
        "v_mul_u32_u24 v31, 5, v31", "v_add_u32 v30, v30, v31",
        f"s_lshr_b32 s16, s{sW}, 1", "s_mul_i32 s16, s16, 400", f"s_mul_i32 s17, s{sNB}, 50", "s_add_u32 s16, s16, s17",
        f"s_and_b32 s17, s{sW}, 1", "s_mul_i32 s17, s17, 5", "s_add_u32 s16, s16, s17", "s_add_u32 s16, s16, 800",
        "v_add_u32 v30, s16, v30", "v_cmp_gt_u32 vcc, s18, v1", "v_and_b32 v30, 1023, v30",
        f"v_cndmask_b32 v{v}, v30, v{v}, vcc", f"v_lshlrev_b32 v{v}, 7, v{v}"]:
        a(x)


def f6_store(v):
    return ("vm", "f6s", f"buffer_store_dword v13, v{v}, {srdr(rFL)}, s{sF6} offen {SC}")


def lane0(a, v, sreg):
    a(f"s_cmp_eq_u32 s{sW}, 0")
    a(f"s_cselect_b32 s{sreg}, s{sreg}, {OOB}")
    a(f"v_mov_b32 v{v}, {OOB}")
    a(f"v_writelane_b32 v{v}, s{sreg}, 0")


def gen(a, name):
    W1 = 96
    RINGF = [("v", 48), ("v", 56), ("v", 64), ("a", 240), ("a", 248)]
    ACCF = (16, 32)
    TT, SS, SB = 72, 80, 88
    PK = TT
    vLD = (8, 9)
    vST, vFL, vTB, vP6, vF6, vX = 10, 11, 0, 6, 3, 12
    vS = (8, 9, 10, 11)
    a(head(name))
    a("s_cmp_ge_u32 s2, 256")
    a("s_cbranch_scc1 L_end")
    a("s_load_dwordx16 s[64:79], s[0:1], 0")
    a("s_load_dwordx16 s[80:95], s[0:1], 64")
    if DIAG:
        a("s_memrealtime s[98:99]")
    a("v_lshrrev_b32 v1, 6, v0")
    a(f"s_lshr_b32 s{sIDX}, s2, 3")
    a(f"v_readfirstlane_b32 s{sW}, v1")
    a("s_getpc_b64 s[16:17]")
    a("L_pc:")
    a(f"s_lshl_b32 s18, s{sIDX}, 11")
    a("v_lshl_add_u32 v5, v0, 3, s18")
    a("v_min_u32 v5, L_end-L_pc, v5")
    a("global_load_dword a255, v5, s[16:17]")
    a("v_and_b32 v1, 63, v0")
    a("v_lshrrev_b32 v6, 5, v0")
    a("s_lshl_b32 s18, s2, 3")
    a("v_add_u32 v6, s18, v6")
    a("v_and_b32 v7, 31, v0")
    a("v_mul_u32_u24 v5, 1280, v6")
    a("v_lshl_add_u32 v5, v7, 3, v5")
    a(f"s_and_b32 s{sXCD}, s2, 7")
    decode_roles(a)
    a(f"s_lshr_b32 s17, s{sW}, 1")
    a(f"s_cmp_eq_u32 s{sROLE}, 0")
    a("s_cbranch_scc1 L_wssm")
    X, U = 32, 48

    def first_loads(pa, pb, nbytes, spare):
        a("s_waitcnt lgkmcnt(0)")
        a.q = []
        a(f"s_bitcmp1_b32 s{sW}, 0")
        a(f"s_cselect_b32 s{rT}, s{pb}, s{pa}")
        a(f"s_cselect_b32 s{rT+1}, s{pb+1}, s{pa+1}")
        a(f"s_mov_b32 s{rT+2}, {nbytes}")
        if spare:
            a(f"s_cmp_eq_u32 s{sROLE}, 2")
            a(f"s_cselect_b32 s{rT+2}, 0, s{rT+2}")
        a(f"s_mov_b32 s{rT+3}, 0x20000")
        if TOUCH:
            a.vm("touch", f"buffer_load_dword a254, v12, {srdr(rT)}, s19 offen {NT_T}")
        a.srd(rX, pX, 2048 * 1280)
        for u in range(5):
            a.vm("sx", f"buffer_load_dwordx2 {vr(X+2*u,2)}, v5, {srdr(rX)}, 0 offen offset:{256*u}")
        a(f"s_add_u32 s18, s{pWS}, {FLG_OFF}")
        a(f"s_addc_u32 s19, s{pWS+1}, 0")
        a(f"s_load_dword s{sTAG}, s[18:19], {F_G}")
        a.srd(rWA, pa, nbytes)
        a.srd(rWB, pb, nbytes)
        a(f"s_mov_b32 s{rWA+2}, s{rT+2}")
        a(f"s_mov_b32 s{rWB+2}, s{rT+2}")
        a("v_lshlrev_b32 v2, 4, v1")
        a(f"s_mul_i32 s{sWP}, s{sW}, 10240")
        a("v_lshrrev_b32 v3, 3, v1")
        a("v_and_b32 v4, 7, v1")

    a(f"s_lshl_b32 s16, s{sUNIT}, 7")
    a("s_mul_i32 s17, s17, 384")
    a(f"s_add_u32 s17, s17, s{sPART}")
    a("s_mul_i32 s17, s17, 3456")
    a("s_add_u32 s19, s16, s17")
    a(f"v_mul_u32_u24 v12, {6*3456}, v1")
    first_loads(pW1, pW3, 640 * 3456, True)
    a("v_and_b32 v24, 2, v3")
    a("v_xor_b32 v24, v4, v24")
    a("v_mul_u32_u24 v25, 3456, v3")
    a("v_lshl_add_u32 v24, v24, 4, v25")
    a("v_xor_b32 v25, 64, v24")
    a("v_mov_b32 v26, v24")
    a("v_mov_b32 v27, v25")
    a(f"s_mul_i32 s{sWB}, s{sW}, {10*8*3456}")
    a(f"s_add_u32 s{sWB}, s{sWB}, s16")
    a(f"s_mov_b32 s{sSA}, {8*3456}")
    a(f"s_mov_b32 s{sSB}, {40*3456}")
    a(f"s_mov_b32 s{sSH}, {320*3456}")
    a(f"s_mul_i32 s{sXO}, s{sPART}, {SLOT}")
    a("v_lshrrev_b32 v16, 4, v1")
    a("v_bfe_u32 v17, v1, 2, 2")
    a("v_and_b32 v18, 3, v1")
    a("v_and_b32 v19, 1, v16")
    a("v_lshrrev_b32 v20, 1, v17")
    a("v_lshl_add_u32 v19, v19, 1, v20")
    a(f"v_xor_b32 v19, s{sW}, v19")
    a("v_lshlrev_b32 v19, 5, v19")
    a("v_lshl_add_u32 v19, v18, 3, v19")
    a("v_lshl_add_u32 v19, v17, 7, v19")
    a("v_lshl_add_u32 v20, v16, 10, v19")
    for k in range(1, 4):
        a(f"v_add_u32 v{20+k}, {k*SLOT}, v20")
    a("v_and_b32 v17, 15, v1")
    a("v_lshrrev_b32 v18, 3, v17")
    a("v_mul_u32_u24 v18, 10240, v18")
    a("v_and_b32 v19, 7, v17")
    a("v_lshl_add_u32 v18, v19, 7, v18")
    a("v_lshrrev_b32 v19, 1, v17")
    a("v_xor_b32 v19, v19, v16")
    a(f"v_lshl_add_u32 v{vLD[0]}, v19, 4, v18")
    a(f"v_xor_b32 v{vLD[1]}, 64, v{vLD[0]}")
    a("v_lshlrev_b32 v17, 4, v17")
    a(f"v_add_u32 v{vTB}, {TBL}, v17")
    a("v_and_b32 v18, 1, v16")
    a(f"v_mul_u32_u24 v18, {94*1024}, v18")
    a("v_lshrrev_b32 v19, 1, v16")
    a("v_lshl_add_u32 v18, v19, 8, v18")
    a(f"s_lshl_b32 s16, s{sUNIT}, 2")
    a(f"s_add_u32 s16, s16, s{sW}")
    a("s_lshl_b32 s16, s16, 9")
    a(f"v_add3_u32 v{vST}, v18, v17, s16")
    a(f"s_mul_i32 s{sST}, s{sPART}, {2*94*1024}")
    a(f"s_lshl_b32 s16, s{sUNIT}, 7")
    lane0(a, vFL, 16)
    a(f"s_add_u32 s17, s16, {6*4096}")
    a(f"v_mov_b32 v14, v{vFL}")
    a("v_writelane_b32 v14, s17, 1")
    a(f"s_lshl_b32 s{sFO}, s{sPART}, 12")
    a(f"s_add_u32 s{sFO}, s{sFO}, {F2}")
    a("v_and_b32 v17, 31, v1")
    a("v_and_b32 v18, 4, v17")
    a("v_lshlrev_b32 v18, 2, v18")
    a("v_and_b32 v19, 3, v17")
    a("v_add_u32 v18, v18, v19")
    a("v_lshrrev_b32 v19, 3, v17")
    a("v_lshl_add_u32 v18, v19, 2, v18")
    a("v_lshlrev_b32 v18, 3, v18")
    a("v_lshrrev_b32 v19, 5, v1")
    a("v_lshlrev_b32 v19, 2, v19")
    a(f"v_add_u32 v19, s{sW}, v19")
    a("v_lshlrev_b32 v17, 4, v17")
    a(f"v_lshl_add_u32 v{SB+3}, v19, 9, v17")
    a(f"v_add_u32 v{SB+3}, {TBL}, v{SB+3}")
    a(f"v_mul_u32_u24 v19, {6*256}, v19")
    a(f"s_lshl_b32 s16, s{sPART}, 8")
    a(f"s_add_u32 s16, s16, {FST}")
    a(f"v_add3_u32 v{SB+2}, v19, v18, s16")
    a(f"s_add_u32 s17, s{sW}, 8")
    a("s_min_u32 s17, s17, 10")
    a("s_lshl_b32 s18, s17, 9")
    a(f"s_add_u32 s18, s18, {TBL}")
    a(f"v_add_u32 v{SB+7}, s18, v17")
    a("s_mul_i32 s17, s17, 6")
    a(f"s_add_u32 s17, s17, s{sPART}")
    a("s_min_u32 s17, s17, 63")
    a("s_lshl_b32 s17, s17, 8")
    a(f"s_add_u32 s17, s17, {FST}")
    a(f"v_add_u32 v{SB+6}, s17, v18")
    qf = list(a.q)
    a("s_branch L_wjoin")

    a("L_wssm:")
    a(f"s_mul_i32 s16, s{sUNIT}, {64*1280}")
    a("s_mul_i32 s17, s17, 5120")
    a("s_add_u32 s19, s16, s17")
    a(f"s_mul_i32 s17, s{sPART}, 10240")
    a("s_add_u32 s19, s19, s17")
    a("v_min_u32 v12, 39, v1")
    a("v_lshlrev_b32 v12, 7, v12")
    first_loads(pBRE, pBIM, 640 * 1280, False)
    a(f"s_lshl_b32 s52, s{sUNIT}, 2")
    a(f"s_add_u32 s52, s52, s{sW}")
    a("s_lshl_b32 s17, s52, 5")
    a("v_and_b32 v16, 30, v1")
    a("v_add_u32 v16, s17, v16")
    a(f"global_load_ushort v88, v16, s[{pLRE}:{pLRE+1}]")
    a(f"global_load_ushort v89, v16, s[{pLIM}:{pLIM+1}]")
    a(f"global_load_ushort v90, v16, s[{pLDT}:{pLDT+1}]")
    a("v_lshrrev_b32 v24, 1, v3")
    a("v_xor_b32 v24, v4, v24")
    a("v_mul_u32_u24 v25, 1280, v3")
    a("v_lshl_add_u32 v24, v24, 4, v25")
    a("v_mov_b32 v25, v24")
    a("v_xor_b32 v26, 64, v24")
    a("v_mov_b32 v27, v26")
    a(f"s_mul_i32 s{sWB}, s{sW}, {16*1280}")
    a(f"s_add_u32 s{sWB}, s{sWB}, s16")
    a(f"s_mov_b32 s{sSA}, 128")
    a(f"s_mov_b32 s{sSB}, 10240")
    a(f"s_mov_b32 s{sSH}, 640")
    a(f"s_mul_i32 s{sXO}, s{sPART}, {8*SLOT}")
    a("v_and_b32 v14, 1, v1")
    a("v_bfe_u32 v19, v1, 1, 4")
    a("v_lshrrev_b32 v30, 5, v1")
    a("v_bfe_u32 v16, v19, 1, 2")
    a("v_lshl_add_u32 v16, v14, 2, v16")
    a("v_xor_b32 v16, v16, v30")
    a("v_lshlrev_b32 v16, 4, v16")
    a("v_and_b32 v17, 7, v19")
    a("v_lshlrev_b32 v17, 7, v17")
    a("v_lshrrev_b32 v18, 3, v19")
    a("v_mul_u32_u24 v18, 5120, v18")
    a(f"v_add3_u32 v17, v17, v18, s{sWP}")
    a(f"v_mul_u32_u24 v18, {SLOT}, v14")
    a("v_add_u32 v17, v17, v18")
    for e in range(4):
        a(f"v_xor_b32 v{20+e}, {32*e}, v16")
        a(f"v_add_u32 v{20+e}, v{20+e}, v17")
    a("v_lshlrev_b32 v14, 31, v14")
    a("v_and_b32 v16, 31, v1")
    a("v_lshrrev_b32 v17, 3, v16")
    a("v_mul_u32_u24 v17, 10240, v17")
    a("v_and_b32 v18, 7, v16")
    a("v_lshl_add_u32 v17, v18, 7, v17")
    a("v_bfe_u32 v18, v16, 1, 3")
    a("v_xor_b32 v18, v18, v30")
    a(f"v_lshl_add_u32 v{vS[0]}, v18, 4, v17")
    for e in range(1, 4):
        a(f"v_xor_b32 v{vS[e]}, {32*e}, v{vS[0]}")
    a("v_lshlrev_b32 v17, 2, v30")
    a(f"v_add_u32 v17, s{sW}, v17")
    a("v_lshlrev_b32 v17, 8, v17")
    a("v_lshl_add_u32 v17, v16, 3, v17")
    a(f"v_add_u32 v47, {TBL}, v17")
    a(f"s_lshl_b32 s16, s{sPART}, 11")
    a(f"s_add_u32 s16, s16, {FST}")
    a("v_add_u32 v46, s16, v17")
    a("v_lshlrev_b32 v17, 7, v30")
    a(f"v_add_u32 v{vTB}, {TBL}, v17")

    a("L_wjoin:")
    a.q = qf
    a("v_and_b32 v12, 4, v3")
    a("v_lshlrev_b32 v12, 2, v12")
    a("v_and_b32 v16, 3, v3")
    a(f"s_lshl_b32 s16, s{sW}, 2")
    a("v_add3_u32 v12, v12, v16, s16")
    a("v_mul_u32_u24 v12, 1280, v12")
    a("v_lshrrev_b32 v16, 1, v3")
    a("s_and_b32 s16, s16, 4")
    a("v_xor_b32 v16, v16, v4")
    a("v_xor_b32 v16, s16, v16")
    a("v_lshl_add_u32 v12, v16, 4, v12")
    a.srd(rA2, pWS, A2_SZ, A2_OFF)
    a.srd(rFL, pWS, FLG_SZ, FLG_OFF)
    p2_scalars(a)
    f6_addr(a, 19)
    pack_setup(a)
    a("v_mul_u32_u24 v16, 20, v1")
    a.vm("touch", f"global_load_dword a253, v16, s[{pDSK}:{pDSK+1}]")
    a("v_mov_b32 v15, 0")
    a("v_lshlrev_b32 v43, 3, v6")
    a(f"v_add_u32 v43, {FST}, v43")
    a("v_cmp_eq_u32 vcc, 0, v7")
    a(f"v_mov_b32 v3, {OOB}")
    a("s_lshl_b32 s16, s2, 2")
    a(f"s_add_u32 s16, s16, s{sW}")
    a("s_lshl_b32 s16, s16, 7")
    a("v_cndmask_b32 v43, v3, v43, vcc")
    a("v_writelane_b32 v3, s16, 0")
    a(f"s_mov_b32 s{sF6}, {F6}")
    for k in range(4):
        a(f"v_mov_b32 v{4+k}, 0x3f803f80")
    a("v_mov_b32 v68, 0")
    a("v_mov_b32 v69, 0")
    a(f"v_cmp_lt_u32 s[{sHM}:{sHM+1}], 31, v1")
    a("s_mov_b32 s12, 0xffff0000")
    dstamp(a, 1)

    def red32(v, t):
        L = [f"v_add_f32_dpp v{v}, v{v}, v{v} row_ror:{n} row_mask:0xf bank_mask:0xf" for n in (8, 4, 2, 1)]
        L += [f"v_mov_b32 v{t}, v{v}", f"v_permlane16_swap_b32 v{v}, v{t}", f"v_add_f32 v{v}, v{v}, v{t}"]
        return L
    S = [("wait", "sx")]
    for e in range(10):
        S.append(f"v_dot2c_f32_bf16 v{68+(e&1)}, v{X+e}, v4")
    for e in range(10):
        S += [f"v_lshlrev_b32 v{U+2*e}, 16, v{X+e}", f"v_and_b32 v{U+2*e+1}, s12, v{X+e}"]
    S.append("v_add_f32 v68, v68, v69")
    S += red32(68, 69)
    S.append("v_mul_f32 v68, 0xbacccccd, v68")
    for e in range(10):
        S.append(f"v_pk_add_f32 {vr(U+2*e,2)}, {vr(U+2*e,2)}, v[68:69] op_sel_hi:[1,0]")
    S.append(f"v_pk_mul_f32 v[70:71], {vr(U,2)}, {vr(U,2)}")
    for e in range(1, 10):
        S.append(f"v_pk_fma_f32 v[70:71], {vr(U+2*e,2)}, {vr(U+2*e,2)}, v[70:71]")
    S.append("v_add_f32 v70, v70, v71")
    S += red32(70, 71)
    S.append("v_mul_f32 v70, 0x3acccccd, v70")
    S += rne(70)
    S.append("v_add_f32 v70, 0x3727c5ac, v70")
    S += rne(70)
    S.append("v_sqrt_f32 v70, v70")
    S += ["s_waitcnt lgkmcnt(0)", f"s_mul_i32 s{sTAG}, s{sTAG}, 0x9e3779b1", f"s_add_u32 s{sTAG}, s{sTAG}, 0x7f4a7c15",
          f"v_mov_b32 v13, s{sTAG}", f"v_mov_b32 v71, s{sTAG}"]
    S.append("v_cvt_pk_bf16_f32 v70, v68, v70")
    S.append(("vm", "gst", f"buffer_store_dwordx2 v[70:71], v43, {srdr(rFL)}, 0 offen {SC}"))
    wd = w_dma(0, range(10)) + w_dma(1, range(5))
    NPRE = int(os.environ.get("NPRE", "4"))
    for x in wd[:NPRE]:
        a.item(x)
    weave(a, S, wd[NPRE:])
    dstamp(a, 2)
    a.vmwait(("w", 0))
    a("s_barrier")
    dstamp(a, 3)
    a(f"s_cmp_eq_u32 s{sROLE}, 0")
    a("s_cbranch_scc1 L_ssm")
    a(f"s_cmp_eq_u32 s{sROLE}, 2")
    a("s_cbranch_scc1 L_spare")
    q0 = list(a.q)
    f6_load = lambda v: f"buffer_load_dword v{v}, v{v+1}, {srdr(rFL)}, s{sF6} offen {SC}"
    f6_chk = lambda v: [f"v_cmp_ne_u32 vcc, v{v}, v13"]

    a.lq = []

    def ffn_tr(half):
        L = []
        for K in range(10):
            for mat in range(2):
                w = W1 + 8 * (10 * half + K) + 4 * mat
                L.append(("lg", ("t", K), f"ds_read_b64_tr_b16 {vr(w,2)}, v{20+2*half+mat} offset:{4096*K}"))
                L.append(("lg", ("t", K), f"ds_read_b64_tr_b16 {vr(w+2,2)}, v{20+2*half+mat} offset:{4096*K+512}"))
            if K >= 2:
                L += ffn_cs(half, K - 2)
        return L + ffn_cs(half, 8) + ffn_cs(half, 9)

    def ffn_cs(half, K):
        L = [("lgwait", ("t", K))]
        for mat in range(2):
            w = W1 + 8 * (10 * half + K) + 4 * mat
            c = "0" if (half == 0 and K == 0) else vr(SS + 4 * mat, 4)
            L.append(f"v_mfma_f32_16x16x32_bf16 {vr(SS+4*mat,4)}, {vr(w,4)}, v[4:7], {c}")
        return L
    weave(a, ffn_tr(0), w_dma(1, range(5, 10)))
    a(f"s_mov_b32 m0, s{sWP}")
    a("s_barrier")
    dstamp(a, 4)
    a.item(x_dma(0, 0, 6, vX))
    pack_srds(a)
    a.vmwait(("w", 1))
    a("s_barrier")
    dstamp(a, 5)
    for x in ffn_tr(1):
        a.item(x)
    gl = [f"buffer_load_dwordx2 {vr(SB,2)}, v{SB+2}, {srdr(rFL)}, 0 offen {SC}",
          f"buffer_load_dwordx2 {vr(SB+4,2)}, v{SB+6}, {srdr(rFL)}, 0 offen {SC}"]
    a("v_mov_b32 v7, v19")
    a("v_mov_b32 v4, v17")
    a("v_mov_b32 v5, v18")
    for k in range(4):
        a(f"v_mov_b32 v{32+k}, v{28+k}")
    a.waitall_lg(("x", 0))
    a("s_barrier")
    dstamp(a, 6)

    def rd(r, K, sb):
        kind, base = RINGF[K % 5]
        return ("lg", ("x", r, K), f"ds_read_b128 {vr(base+4*sb,4,kind)}, v{vLD[K&1]} offset:{1024*(K>>1) + 20480*sb}")
    for K in range(4):
        a.item(rd(0, K, 0))
        a.item(rd(0, K, 1))

    def ffn_table():
        gc = [f"v_xor_b32 v{TT}, v{SB+1}, v13", f"v_xor_b32 v{TT+1}, v{SB+5}, v13", f"v_or_b32 v{TT}, v{TT}, v{TT+1}",
              f"v_cmp_ne_u32 vcc, 0, v{TT}"]
        L = [lambda: async_check(a, "gr", gl, gc, "gr")]
        for b, t in ((SB, TT), (SB + 4, TT + 4)):
            L += [f"v_and_b32 v{t+2}, 0xffff0000, v{b}", f"v_lshlrev_b32 v{t}, 16, v{b}", f"v_rcp_f32 v{t+1}, v{t+2}",
                  f"v_mul_f32 v{t+2}, v{t+2}, v{t+2}", f"v_mul_f32 v{t+1}, {NLOG2E:#x}, v{t+1}",
                  ("lg", "tw", f"ds_write_b96 v{b+3}, {vr(t,3)}")]
        return L

    def ffn_epilogue(acc, r):
        g = lambda j: acc + (j & 3) + 8 * (j >> 2)
        u = lambda j: g(j) + 4
        st = lambda j: SB + 4 * (j >> 2)
        L = [("lgwait", ("tb", r))]
        for j in range(8):
            L.append(f"v_fmac_f32 v{g(j)}, v{st(j)}, v{SS+(j&3)}")
        for j in range(8):
            L.append(f"v_mul_f32 v{TT+j}, v{st(j)+1}, v{g(j)}")
            L.append(f"v_fmac_f32 v{u(j)}, v{st(j)}, v{SS+4+(j&3)}")
        for j in range(8):
            L.append(f"v_exp_f32 v{TT+j}, v{TT+j}")
            L.append(f"v_mul_f32 v{g(j)}, v{g(j)}, v{u(j)}")
        for j in range(8):
            L.append(f"v_fma_f32 v{TT+j}, v{TT+j}, v{st(j)+2}, v{st(j)+2}")
        for j in range(8):
            L.append(f"v_rcp_f32 v{TT+j}, v{TT+j}")
            if j:
                L.append(f"v_mul_f32 v{g(j-1)}, v{g(j-1)}, v{TT+j-1}")
        L.append(f"v_cvt_pk_bf16_f32 v{PK}, v{g(0)}, v{g(1)}")
        L.append(f"v_mul_f32 v{g(7)}, v{g(7)}, v{TT+7}")
        L.append(f"v_cvt_pk_bf16_f32 v{PK+2}, v{g(4)}, v{g(5)}")
        L.append(f"v_cvt_pk_bf16_f32 v{PK+1}, v{g(2)}, v{g(3)}")
        L.append(f"v_cvt_pk_bf16_f32 v{PK+3}, v{g(6)}, v{g(7)}")
        L.append(f"v_permlane16_swap_b32 v{PK}, v{PK+2}")
        L.append(f"v_permlane16_swap_b32 v{PK+1}, v{PK+3}")
        return L

    def ffn_store(r):
        return [("vm", ("st", r), f"buffer_store_dwordx4 {vr(PK,4)}, v{vST}, {srdr(rA2)}, s{sST} offen {os.environ.get('SCS', SC)}"),
                f"s_add_u32 s{sST}, s{sST}, {6*2*94*1024}"]

    nbg = sum(BG_ROUNDS)
    bg = bg_items(range(nbg))
    bgpos = 0
    first_bg = min(r for r, n in enumerate(BG_ROUNDS + [1]) if n)
    first_bg = min(first_bg, 10)

    def ffn_round(r):
        nonlocal bgpos
        acc = ACCF[r & 1]
        last = r == 10
        fixed = {}
        add = lambda g, x: fixed.setdefault(g, []).append(x)
        for K in range(16):
            add(4 * K, rd(r, K + 4, 0))
            add(4 * K + 2, rd(r, K + 4, 1))
        for K in range(2, 18, 2):
            add(4 * K - 1, ("lgwait", ("x", r, K + 1)))
        dl = SLOT if (r + 1) % 3 else -2 * SLOT
        if not last:
            add(65, f"v_add_u32 v{vLD[0]}, {dl & 0xffffffff:#x}, v{vLD[0]}")
            add(66, f"v_add_u32 v{vLD[1]}, {dl & 0xffffffff:#x}, v{vLD[1]}")
        add(67, lambda: a.waitall_lg(("x", r + 1), ("st", r - 2)))
        add(67, "s_barrier")
        if not last:
            add(67, rd(r + 1, 0, 0))
            add(67, rd(r + 1, 0, 1))
            for K in range(1, 4):
                add(4 * (16 + K), rd(r + 1, K, 0))
                add(4 * (16 + K) + 2, rd(r + 1, K, 1))
        for sb in range(2):
            add(71 + 2 * sb, ("lg", ("tb", r), f"ds_read_b96 {vr(SB+4*sb,3)}, v{vTB} offset:{512*r + 256*sb}"))
        if not last:
            add(79, ("lgwait", ("x", r + 1, 1)))
        if r >= 2:
            add(69, [("vm", ("fl", r - 2), f"buffer_store_dword v13, v{vFL}, {srdr(rFL)}, s{sFO} offen {SC}"),
                     f"s_add_u32 s{sFO}, s{sFO}, {6*4096}"])
        if r == 1:
            pl_, pm_ = pack_finish(200)
            for k, x in enumerate(pl_):
                add(1 + 2 * k, x)
            for k, x in enumerate(pm_):
                add(25 + 2 * k, x)
        if r == 2:
            add(21, [("wait", "pks"), f6_store(vF6)])
        if r == first_bg - 1:
            add(45, ("vm", "f6", f6_load(vP6)))
            add(77, lambda: async_check(a, "f6", [f6_load(vP6)], f6_chk(vP6), "f6"))
        mem = x_dma(r + 2, (r + 2) % 3, 6, vX) if r + 2 <= 10 else []
        n = BG_ROUNDS[r] if r < len(BG_ROUNDS) else 0
        b = bg[bgpos:bgpos + n]
        bgpos += len(b)
        mix = []
        tot = len(mem) + len(b)
        im = ip = 0
        for i in range(tot):
            if ip < len(b) and ((ip + 1) * tot <= (i + 1) * len(b) or im >= len(mem)):
                mix.append(b[ip])
                ip += 1
            else:
                mix.append(mem[im])
                im += 1
        if r:
            ep, rng = ffn_epilogue(ACCF[(r - 1) & 1], r - 1) + [ffn_store(r - 1)], (3, 64)
        else:
            early = x_dma(1, 1, 6, vX) + [[("vm", "gr", y) for y in gl]] + pack_loads(32, f"s_add_u32 m0, s{sWP}, {2*SLOT}")
            for k, x in enumerate(early):
                add(1 + 2 * k, x)
            ep, rng = ffn_table(), (40, 64)
        X = os.environ.get("X", "")
        if r >= 4:
            if "e" in X:
                ep = [ep[0], ep[-1]]
            if "t" in X:
                ep = [x for x in ep if not (isinstance(x, str) and x.startswith(("v_exp", "v_rcp")))]
            if "d" in X:
                mix = []
            if "b" in X:
                fixed[67] = [x for x in fixed[67] if x != "s_barrier"]
            if "s" in X:
                mix = [[y for y in x if not isinstance(y, str)] for x in mix]
        gaps = schedule(80, fixed, 2, mix, (1 if r else 36, 78), ep, rng)
        for m in range(80):
            K, n = divmod(m, 4)
            sb, mat = n >> 1, n & 1
            kind, base = RINGF[K % 5]
            d = acc + 8 * sb + 4 * mat
            c = "0" if K == 0 else vr(d, 4)
            a(f"v_mfma_f32_16x16x32_bf16 {vr(d,4)}, {vr(W1+8*K+4*mat,4)}, {vr(base+4*sb,4,kind)}, {c}")
            for x in gaps[m]:
                a.item(x)

    a.lgwait(("x", 0, 1))
    for r in range(10):
        ffn_round(r)
        if r < 5:
            dstamp(a, r + 1, True)
        if DIAG and r == 3:
            a("s_memtime s[70:71]")
            a("s_waitcnt lgkmcnt(0)")
        if DIAG and r == 9:
            a("s_memtime s[96:97]")
            a("s_waitcnt lgkmcnt(0)")
            a("s_sub_u32 s96, s96, s70")
            a("v_writelane_b32 v15, s96, 15")
    a(f"s_cmp_ge_u32 s{sPART}, 4")
    a("s_cbranch_scc1 L_fin9")
    ffn_round(10)
    for lab, r in ((None, 10), ("L_fin9", 9)):
        if lab:
            a(f"{lab}:")
            a("s_nop 7")
        dstamp(a, 7)
        a("s_waitcnt lgkmcnt(0)")
        for x in ffn_epilogue(ACCF[r & 1], r)[1:]:
            a(x)
        a.item(ffn_store(r)[0])
        a("s_branch L_p2")

    a("L_ssm:")
    a.q = list(q0)
    a.lq = []
    RING = 224
    NR = 8
    ACC = (56, 72)
    ST, Z, PA, PB = 96, 88, 224, 240
    CA, CB, R, M, T0, T1, SU = 48, 49, 50, 51, 52, 53, 54
    SQ = 16

    def ssm_w(half):
        L = []
        for ks in range(20):
            w = 4 * (20 * half + ks)
            L.append(("lg", ("t", ks), f"ds_read_b128 a[{w}:{w+3}], v{20+ks%4} offset:{1024*(ks//4)}"))
            if ks >= 6:
                L += ssm_cs(half, ks - 6)
        for ks in range(14, 20):
            L += ssm_cs(half, ks)
        return L

    def ssm_cs(half, ks):
        w = 4 * (20 * half + ks)
        c = "0" if w == 0 else vr(ACC[1], 16)
        return [("lgwait", ("t", ks)), f"v_mfma_f32_32x32x16_bf16 {vr(ACC[1],16)}, v[4:7], a[{w}:{w+3}], {c}"]
    weave(a, ssm_w(0), w_dma(1, range(5, 10)))
    a(f"s_mov_b32 m0, s{sWP}")
    a("s_barrier")
    dstamp(a, 4)
    a.item(x_dma(0, 0, 1, vX))
    pack_srds(a)
    for e in range(4):
        a(f"v_add_u32 v{20+e}, {2*SLOT}, v{20+e}")
    for x in ["v_lshlrev_b32 v88, 16, v88", "v_lshlrev_b32 v89, 16, v89", "v_lshlrev_b32 v90, 16, v90",
              f"v_mul_f32 v90, {LOG2E:#x}, v90", "v_exp_f32 v90, v90"] + rne(90) + [
              "v_mul_f32 v91, v90, v88", "v_mul_f32 v92, v90, v89", f"v_mul_f32 v91, {LOG2E:#x}, v91", "v_exp_f32 v91, v91",
              "v_mul_f32 v92, 0.15915494, v92", "v_fract_f32 v92, v92", "v_cos_f32 v93, v92", "v_sin_f32 v94, v92",
              "v_mul_f32 v93, v91, v93", "v_mul_f32 v94, v91, v94", "v_add_f32 v91, -1.0, v93",
              "v_mul_f32 v92, v88, v88", "v_fmac_f32 v92, v89, v89", "v_rcp_f32 v92, v92",
              "v_mul_f32 v95, v91, v88", "v_fmac_f32 v95, v94, v89", "v_mul_f32 v90, v94, v88",
              "v_fma_f32 v90, -v91, v89, v90", "v_add_f32 v92, v92, v92", "v_mul_f32 v95, v95, v92", "v_mul_f32 v90, v90, v92",
              f"v_xor_b32 v{CA}, v14, v95", f"v_sub_f32 v{CB}, 0, v90", f"v_mov_b32 v{PA}, v93", f"v_xor_b32 v{PB}, v14, v94",
              f"v_mov_b32 v{R}, 0"]:
        a(x)
    a.vmwait(("w", 1))
    dstamp(a, 5)
    for x in ssm_w(1):
        a.item(x)
    gls = [f"buffer_load_dwordx2 v[44:45], v46, {srdr(rFL)}, 0 offen {SC}"]
    a("v_mov_b32 v7, v19")
    a("v_mov_b32 v4, v17")
    a("v_mov_b32 v5, v18")
    a.waitall_lg(("x", 0))
    a("s_barrier")
    dstamp(a, 6)
    table = [f"v_mov_b32 v{SU}, v{ACC[1]}"]
    for j in range(1, 16):
        table += [f"v_mul_f32 v{PA+j}, v{PA+j-1}, v{PA}", f"v_mul_f32 v{PB+j}, v{PA+j-1}, v{PB}",
                  f"v_fma_f32 v{PA+j}, -v{PB+j-1}, v{PB}, v{PA+j}", f"v_fmac_f32 v{PB+j}, v{PB+j-1}, v{PA}"]
    table += [lambda: async_check(a, "gr", gls, ["v_cmp_ne_u32 vcc, v45, v13"], "grs"),
              "v_and_b32 v45, 0xffff0000, v44", "v_lshlrev_b32 v44, 16, v44", "v_rcp_f32 v45, v45", "s_nop 0",
              ("lg", "tw", "ds_write_b64 v47, v[44:45]")]


    def srd_(r, k):
        return ("lg", ("x", r, k), f"ds_read_b128 a[{RING+4*(k%NR)}:{RING+4*(k%NR)+3}], v{vS[k&3]} offset:{1024*(k>>2)}")
    for k in range(7):
        a.item(srd_(0, k))

    def ssm_epilogue(acc, r):
        s = ST + 16 * r
        L = [("lgwait", ("tb", r))]
        def cen(j):
            return [f"v_fmac_f32 v{acc+j}, v{SQ+2*j}, v{SU}", f"v_mul_f32 v{acc+j}, v{acc+j}, v{SQ+2*j+1}"]
        def coef(j):
            return [f"v_mul_f32_dpp v{s+j}, v{acc+j}, v{CB} {DPPX}", f"v_fmac_f32 v{s+j}, v{CA}, v{acc+j}"]
        L += cen(0) + cen(1) + cen(2) + coef(0) + cen(3) + coef(1) + coef(2)
        for j in range(1, 16):
            L += [f"v_fmac_f32_dpp v{s+j}, v{s+j-1}, v{PB} {DPPX}", f"v_fmac_f32 v{s+j}, v{PA}, v{s+j-1}"]
            if j + 2 < 16:
                L += coef(j + 2)
            elif j == 14:
                L += [f"v_mul_f32_dpp v{M}, v{R}, v{PB+15} {DPPX}", f"v_fmac_f32 v{M}, v{PA+15}, v{R}"]
            if j + 3 < 16:
                L += cen(j + 3)
        L += [f"v_mov_b32 v{T0}, v{s+15}", f"v_mov_b32 v{T1}, v{s+15}",
              f"v_permlane32_swap_b32 v{T0}, v{T1}",
              f"v_add_f32 v{M}, v{M}, v{T0}",
              f"v_cndmask_b32 v{Z+r}, v{R}, v{M}, s[{sHM}:{sHM+1}]",
              f"v_fma_f32 v{R}, v{PA+15}, v{M}, v{T1}",
              f"v_mul_f32_dpp v{T0}, v{M}, v{PB+15} {DPPX}",
              f"v_add_f32 v{R}, v{R}, v{T0}"]
        return L

    def tb_reads(r):
        return [("lg", ("tb", r), f"ds_read_b128 {vr(SQ+4*c,4)}, v{vTB} offset:{256*r + 16*c}") for c in range(8)]

    early = list(range(40, 56))
    bge = bg_items(early)
    a.lgwait(("x", 0, 1))
    for r in range(8):
        last = r == 7
        fixed = {}
        add = lambda g, x: fixed.setdefault(g, []).append(x)
        for m in range(33):
            add(m, srd_(r, m + 7))
        for m in range(2, 36, 2):
            add(m - 1, ("lgwait", ("x", r, m + 1)))
        if r:
            for c, x in enumerate(tb_reads(r - 1)):
                add(c // 2, x)
        dl = SLOT if (r + 1) % 3 else -2 * SLOT
        if not last:
            for e in range(4):
                add(33 + e // 2, f"v_add_u32 v{vS[e]}, {dl & 0xffffffff:#x}, v{vS[e]}")
            add(35, lambda: a.waitall_lg(("x", r + 1)))
            add(35, "s_barrier")
            for k in range(3):
                add(35, srd_(r + 1, k))
            for m in range(36, 40):
                add(m, srd_(r + 1, m - 33))
            add(39, ("lgwait", ("x", r + 1, 1)))
        else:
            add(35, lambda: a.waitall_lg())
        if r == 0:
            for k, x in enumerate(x_dma(1, 1, 1, vX) + [("vm", "gr", gls[0])] + pack_loads(28, f"s_add_u32 m0, s{sWP}, {2*SLOT}")):
                add(k, x)
        if r == 1:
            pl_, pm_ = pack_finish(200)
            for k, x in enumerate(pl_):
                add(4 + k, x)
            for k, x in enumerate(pm_):
                add(16 + k, x)
        if r == 2:
            add(10, [("wait", "pks"), f6_store(vF6)])
        if r == 3:
            add(20, ("vm", "f6", f6_load(6)))
            add(38, lambda: async_check(a, "f6", [f6_load(6)], f6_chk(6), "f6s"))
        mem = x_dma(r + 2, (r + 2) % 3, 1, vX) if r + 2 <= 7 else []
        if r >= 4:
            mem = mem + bge[4 * (r - 4):4 * (r - 3)]
        ep, rng = (ssm_epilogue(ACC[(r - 1) & 1], r - 1), (6, 39)) if r else (table, (4, 33))
        gaps = schedule(40, fixed, 4, mem, (0 if r else 18, 38), ep, rng)
        acc = ACC[r & 1]
        for m in range(40):
            c = "0" if m == 0 else vr(acc, 16)
            a(f"v_mfma_f32_32x32x16_bf16 {vr(acc,16)}, a[{RING+4*(m%NR)}:{RING+4*(m%NR)+3}], a[{4*m}:{4*m+3}], {c}")
            for x in gaps[m]:
                a.item(x)
        if r < 5:
            dstamp(a, r + 1, True)
    dstamp(a, 7)
    for x in tb_reads(7):
        a.item(x)
    a("s_lshl_b32 s16, s52, 11")
    a(f"s_add_u32 s16, s16, {AGG_OFF}")
    a(f"s_add_u32 s{rWA}, s{pWS}, s16")
    a(f"s_addc_u32 s{rWA+1}, s{pWS+1}, 0")
    a(f"s_mov_b32 s{rWA+2}, 2048")
    a(f"s_mov_b32 s{rWA+3}, 0x20000")
    a("v_and_b32 v4, 31, v1")
    a("v_lshlrev_b32 v4, 3, v4")
    a(f"s_lshl_b32 s16, s{sPART}, 8")
    a("v_add_u32 v4, s16, v4")
    a("v_mov_b32 v7, v13")
    for x in ssm_epilogue(ACC[1], 7):
        a.item(x)
    if os.environ.get("SST"):
        dstamp(a, 3, RST)
    a(f"v_mov_b32 v6, v{R}")
    a(f"buffer_store_dwordx2 v[6:7], v4, {srdr(rWA)}, 0 offen {SC}")

    def csq(da, db, sa, sb):
        a(f"v_mul_f32 v17, v{sb}, v{sb}")
        a(f"v_mul_f32 v{db}, v{sa}, v{sb}")
        a(f"v_fma_f32 v{da}, v{sa}, v{sa}, -v17")
        a(f"v_add_f32 v{db}, v{db}, v{db}")
    csq(20, 21, PA + 15, PB + 15)
    csq(22, 23, 20, 21)
    csq(24, 25, 22, 23)
    csq(22, 23, 24, 25)
    et = [36, 37, 38, 39, 57, 58, 59]
    for d in range(7):
        a(f"v_subrev_u32 v{26+d}, {256*(d+1)}, v4")
        a(f"s_cmp_gt_u32 s{sPART}, {d}")
        a(f"s_cselect_b32 s{et[d]}, s{sTAG}, 0")
    a(f"s_mul_i32 s16, s{sW}, {2*2560}")
    a(f"s_add_u32 s16, s16, {3*SLOT}")
    a("v_and_b32 v40, 31, v1")
    a("v_mul_u32_u24 v40, 80, v40")
    a("v_lshrrev_b32 v41, 5, v1")
    a("v_lshl_add_u32 v40, v41, 5, v40")
    a("v_add_u32 v40, s16, v40")
    a("v_bfe_u32 v42, v1, 4, 1")
    a("v_bfe_u32 v43, v1, 2, 2")
    a("v_lshl_add_u32 v43, v42, 3, v43")
    a("v_lshl_add_u32 v43, v43, 1, v41")
    a("v_mul_u32_u24 v43, 80, v43")
    a("v_and_b32 v44, 1, v1")
    a("v_lshl_add_u32 v43, v44, 5, v43")
    a("v_bfe_u32 v44, v1, 1, 1")
    a("v_lshl_add_u32 v43, v44, 3, v43")
    a("v_add_u32 v43, s16, v43")
    a("v_mul_u32_u24 v45, 20480, v41")
    a("v_and_b32 v44, 31, v1")
    a("v_lshl_add_u32 v45, v44, 4, v45")
    a("s_lshl_b32 s16, s52, 9")
    a(f"s_add_u32 s16, s16, {54*1024}")
    a("v_add_u32 v45, s16, v45")
    a(f"s_mul_i32 s{sST}, s{sPART}, {16*94*1024}")
    a(f"s_lshl_b32 s16, s{sPART}, 4")
    a(f"s_add_u32 s16, s16, s{sUNIT}")
    a("s_lshl_b32 s16, s16, 7")
    a(f"s_add_u32 s16, s16, {F3}")
    lane0(a, 14, 16)
    E = 56
    chk = [f"v_xor_b32 v{E+2*d+1}, s{et[d]}, v{E+2*d+1}" for d in range(7)]
    chk += [f"v_or3_b32 v17, v{E+1}, v{E+3}, v{E+5}", f"v_or3_b32 v17, v17, v{E+7}, v{E+9}",
            f"v_or3_b32 v17, v17, v{E+11}, v{E+13}", "v_cmp_ne_u32 vcc, 0, v17"]
    spin(a, [f"buffer_load_dwordx2 {vr(E+2*d,2)}, v{26+d}, {srdr(rWA)}, 0 offen {SC}" for d in range(7)], chk, "agg")
    a.q = []
    dstamp(a, 8)
    for d in range(5, -1, -1):
        a(f"v_fmac_f32_dpp v{E+2*d}, v{E+2*d+2}, v23 {DPPX}")
        a(f"v_fmac_f32 v{E+2*d}, v22, v{E+2*d+2}")
    a(f"v_mul_f32_dpp v17, v{E}, v{PB+15} {DPPX}")
    a(f"v_fmac_f32 v17, v{PA+15}, v{E}")
    a(f"v_cndmask_b32 v19, v{E}, v17, s[{sHM}:{sHM+1}]")
    missing = [i for i in range(nbg) if i not in early]
    NT = int(os.environ.get("SSMT", "2"))
    bgm = bg_items(missing)
    pos = 0
    for r in range(8):
        s = ST + 16 * r
        so = (r & 1) * 2560
        a(f"v_add_f32 v24, v{Z+r}, v19")
        a(f"v_mul_f32_dpp v18, v19, v21 {DPPX}")
        a("v_fmac_f32 v18, v20, v19")
        a(f"v_mov_b32_dpp v25, v24 {DPPX}")
        for j in range(0, 16, 2):
            a(f"v_pk_fma_f32 {vr(s+j,2)}, {vr(PA+j,2)}, v[24:25], {vr(s+j,2)} op_sel_hi:[1,0,1]")
        a("v_mov_b32 v19, v18")
        for j in range(0, 16, 2):
            a(f"v_pk_fma_f32 {vr(s+j,2)}, {vr(PB+j,2)}, v[24:25], {vr(s+j,2)} op_sel:[0,1,0]")
        for j in range(8):
            a(f"v_cvt_pk_bf16_f32 v{s+j}, v{s+2*j}, v{s+2*j+1}")
        a(f"ds_write_b128 v40, {vr(s,4)} offset:{so}")
        a(f"ds_write_b128 v40, {vr(s+4,4)} offset:{so+16}")
        for bb in range(2):
            a(f"ds_read_b64_tr_b16 {vr(s+8+4*bb,2)}, v43 offset:{so+16*bb}")
            a(f"ds_read_b64_tr_b16 {vr(s+10+4*bb,2)}, v43 offset:{so+16*bb+640}")
        if r:
            p = s - 16
            a("s_waitcnt lgkmcnt(6)")
            for bb in range(2):
                a.vm("fin", f"buffer_store_dwordx4 {vr(p+8+4*bb,4)}, v45, {srdr(rA2)}, s{sST} offen {SC}")
                a(f"s_add_u32 s{sST}, s{sST}, {94*1024}")
        if r < 6:
            for x in bgm[pos:pos + NT]:
                a.item(x)
            pos += NT
    a("s_waitcnt lgkmcnt(0)")
    p = ST + 16 * 7
    for bb in range(2):
        a.vm("fin", f"buffer_store_dwordx4 {vr(p+8+4*bb,4)}, v45, {srdr(rA2)}, s{sST} offen {SC}")
        a(f"s_add_u32 s{sST}, s{sST}, {94*1024}")
    if os.environ.get("SST"):
        dstamp(a, 1, RST)
    for x in bgm[pos:pos + 3 * NT]:
        a.item(x)
    pos += 3 * NT
    a.vmwait("fin")
    if os.environ.get("SST"):
        dstamp(a, 2, RST)
    a("s_barrier")
    a(f"buffer_store_dword v13, v14, {srdr(rFL)}, 0 offen {SC}")
    for x in bgm[pos:]:
        a.item(x)
    a(f"v_mov_b32 v14, {OOB}")
    a(f"s_mov_b32 s{sFO}, 0")
    a("s_branch L_p2")

    a("L_spare:")
    a.q = []
    pack_srds(a)
    a("v_mov_b32 v4, v17")
    a("v_mov_b32 v5, v18")
    a("s_waitcnt vmcnt(0)")
    a("s_barrier")
    a.item(pack_loads(28, "s_nop 0"))
    for x in pack_finish(200):
        a.item(x)
    a("s_waitcnt vmcnt(0)")
    a.item(f6_store(vF6))
    a("v_mov_b32 v7, v19")
    spin(a, [f6_load(6)], f6_chk(6) + ["s_sleep 32"], "f6p")
    for x in bg_items(range(nbg)):
        a.item(x)
    nog = a.label("nog")
    a(f"s_cmp_lg_u32 s{sPART}, 0")
    a(f"s_cbranch_scc1 {nog}")
    a(f"s_lshl_b32 s16, s{sW}, 15")
    a("v_lshl_add_u32 v8, v1, 9, s16")
    spin(a, [f"buffer_load_dword v{4+k}, v8, {srdr(rFL)}, s{sF6} offen offset:{128*k} {SC}" for k in range(4)],
         and4(4, 0) + ["s_sleep 32"], "gen")
    a("s_barrier")
    a(f"s_mov_b32 s16, {F_G}")
    lane0(a, 5, 16)
    a(f"buffer_store_dword v13, v5, {srdr(rFL)}, 0 offen {SC}")
    a(f"{nog}:")
    a(f"v_mov_b32 v14, {OOB}")
    a(f"s_mov_b32 s{sFO}, 0")

    a("L_p2:")
    a.q = ["fin"]
    a.lq = []
    SH, OWN, TM = 16, (76, 96), 116
    RG = [("v", 144 + 16 * k) for k in range(6)] + [("a", 240)]
    NRG = len(RG)
    vA = (240, 241, 242, 243)
    vPX, vPY, vPD = (244, 245), (246, 247), 248
    vLW, vLR = (249, 250, 251), 252
    vRX, vRD, vOUT, vGR = 8, 9, 10, 11
    RX, RD, GR, PP = TM, TM + 10, TM + 20, TM
    a(f"s_mul_i32 s16, s{sW}, 6")
    a(f"s_add_u32 s17, s{sW}, 23")
    a(f"s_cmp_eq_u32 s{sHALF}, 0")
    a("s_cselect_b32 s16, s16, s17")
    a("s_cselect_b32 s17, 5, 1")
    a("s_cselect_b64 vcc, -1, 0")
    a("v_lshrrev_b32 v5, 1, v1")
    a("v_min_u32 v5, s17, v5")
    a("v_add_u32 v5, s16, v5")
    a("v_min_u32 v5, 26, v5")
    a("v_lshlrev_b32 v5, 7, v5")
    a("v_and_b32 v6, 1, v1")
    a("v_lshl_add_u32 v5, v6, 12, v5")
    a("v_min_u32 v6, 4, v1")
    a(f"s_and_b32 s16, s{sW}, 1")
    a("s_mul_i32 s16, s16, 5")
    a("v_add_lshl_u32 v6, v6, s16, 7")

    def pl(v):
        return f"buffer_load_dword v{vPD}, v{v}, {srdr(rFL)}, 0 offen {SC}"
    pc = [f"v_cmp_ne_u32 vcc, v{vPD}, v13"]
    for gi in range(2):
        a(f"s_xor_b32 s12, s{sG1}, {32*gi}")
        a("s_lshl_b32 s16, s12, 12")
        a(f"s_add_u32 s16, s16, {F2}")
        a(f"v_add_u32 v{vPY[gi]}, s16, v5")
        a("s_lshr_b32 s16, s12, 3")
        a("s_lshl_b32 s16, s16, 11")
        a(f"s_add_u32 s16, s16, {F3}")
        a(f"v_add_u32 v{vPX[gi]}, s16, v6")
        a(f"v_cndmask_b32 v{vPX[gi]}, v{vPX[gi]}, v{vPY[gi]}, vcc")
        if gi == 0:
            a.vm("x1", pl(vPX[0]))
    for al in range(4):
        a(f"s_add_u32 s16, s{sW}, {al}")
        a("s_and_b32 s16, s16, 3")
        a(f"s_lshl_b32 s17, s{sG1}, 1")
        a("s_add_u32 s17, s17, s16")
        a(f"s_mul_i32 s17, s17, {94*1024}")
        a(f"v_add_u32 v{vA[al]}, s17, v2")
        a("s_mul_i32 s16, s16, 15360")
        if al:
            a(f"s_add_u32 s16, s16, {(al-1)*5120}")
            a(f"v_add_u32 v{vLW[al-1]}, s16, v2")
        else:
            a(f"v_add_u32 v{vLR}, s16, v2")
    a(f"s_cmp_eq_u32 s{sHALF}, 0")
    a(f"s_cselect_b32 s11, 1, -1")
    a(f"s_mul_i32 s11, s11, {64*94*1024}")
    a.vmwait("x1")
    a("s_barrier")
    a.vm("flag", f"buffer_store_dword v13, v14, {srdr(rFL)}, s{sFO} offen {SC}")
    dstamp(a, 9)
    async_check(a, "x1", [pl(vPX[0])], pc, "x1")
    dstamp(a, 10)

    def a_load(gs):
        sl = gs % 12
        kind, b = RG[gs % NRG]
        L = []
        for al in range(4):
            it = []
            if sl < 10:
                if sl % 4 == 0 and al == 0:
                    it.append(f"s_add_u32 s19, s{sA1}, {1024*sl}")
                so, off = "s19", 1024 * (sl % 4)
            else:
                so, off = f"s{sA2 if sl == 10 else sA3}", 0
            it.append(("vm", ("a", gs), f"buffer_load_dwordx4 {vr(b+4*al,4,kind)}, v{vA[al]}, {srdr(rA2)}, {so} offen offset:{off} {os.environ.get('SCA', SC)}"))
            L.append(it)
        return L

    for gs in range(D2):
        a.item(a_load(gs))
    rD, rO, rP = rWA, rWB, rT
    a(f"s_lshl_b32 s16, s{sTILE}, 3")
    a(f"s_add_u32 s16, s16, s{sNB}")
    a("s_lshl_b32 s16, s16, 1")
    a(f"s_add_u32 s16, s16, s{sHALF}")
    a("s_lshl_b32 s16, s16, 2")
    a(f"s_add_u32 s16, s16, s{sW}")
    a(f"s_mul_i32 s{sXO}, s16, 5120")
    a("s_xor_b32 s17, s16, 4")
    a(f"s_mul_i32 s{sST}, s17, 5120")
    for k in range(4):
        a(f"s_bfe_u32 s{57+k}, s{sTAG}, {0x80000 + 8*k:#x}")
    a.srd(rP, pWS, P_SZ, P_OFF)
    a.srd(rD, pDSK, 1280)
    a.srd(rO, pOUT, 2048 * 2560)
    a("v_and_b32 v5, 15, v1")
    a("v_lshrrev_b32 v6, 4, v1")
    a(f"s_lshr_b32 s16, s{sW}, 1")
    a("s_add_u32 s16, s16, s12")
    a(f"s_and_b32 s17, s{sW}, 1")
    a("v_and_b32 v7, 4, v5")
    a("v_lshlrev_b32 v7, 2, v7")
    a("v_and_b32 v4, 3, v5")
    a("v_add_u32 v7, v7, v4")
    a("v_lshrrev_b32 v4, 3, v5")
    a("v_lshl_add_u32 v7, v4, 2, v7")
    a("s_lshl_b32 s16, s16, 5")
    a("s_lshl_b32 s17, s17, 3")
    a("s_add_u32 s16, s16, s17")
    a("v_add_u32 v7, s16, v7")
    a(f"s_mul_i32 s16, s{sNB}, 160")
    a(f"v_lshlrev_b32 v{vRD}, 3, v6")
    a(f"v_add_u32 v{vRD}, s16, v{vRD}")
    a(f"v_mul_u32_u24 v{vRX}, 1280, v7")
    a(f"v_add_u32 v{vRX}, v{vRX}, v{vRD}")
    a(f"v_lshlrev_b32 v{vOUT}, 1, v{vRX}")
    a(f"v_lshlrev_b32 v{vGR}, 3, v7")
    a(f"v_add_u32 v{vGR}, {FST}, v{vGR}")
    a("s_mov_b32 s12, 0xffff0000")

    polls = {10: vPY[0], 12: vPX[1], 22: vPY[1]}
    left = bg_items(range(nbg, 60))
    a("v_mov_b32 v253, 0xff")

    def accr(g, al, j):
        return (OWN[g] if al == 0 else SH + 20 * (al - 1)) + 4 * j

    def wr(al):
        return [("lg", "rw", f"ds_write_b128 v{vLW[al-1]}, {vr(accr(0, al, j),4)} offset:{1024*j}") for j in range(5)]

    def mf(gs, al, j):
        sl, g = gs % 12, gs // 12
        kind, b = RG[gs % NRG]
        d = accr(g, al, j)
        w = 4 * (5 * sl + j)
        c = "0" if (sl == 0 and not (g == 1 and al == 0)) else vr(d, 4)
        return f"v_mfma_f32_16x16x32_bf16 {vr(d,4)}, a[{w}:{w+3}], {vr(b+4*al,4,kind)}, {c}"

    side = {gs: [] for gs in range(24)}
    per = (len(left) + 5) // 6
    for k in range(6):
        side[k] += left[k * per:(k + 1) * per]
    res = [[("vm", "res", f"buffer_load_dwordx2 {vr(RX+2*j,2)}, v{vRX}, {srdr(rX)}, 0 offen offset:{32*j}") for j in range(5)]]
    res += [("vm", "res", f"buffer_load_dwordx2 {vr(RD+2*j,2)}, v{vRD}, {srdr(rD)}, 0 offen offset:{32*j}") for j in range(5)]
    grl = f"buffer_load_dwordx2 {vr(GR,2)}, v{vGR}, {srdr(rFL)}, 0 offen {SC}"
    res.append(("vm", "res", grl))
    side[0] += res
    rc = [lambda: async_check(a, "res", [grl], [f"v_cmp_ne_u32 vcc, v{GR+1}, v13"], "res"), f"v_and_b32 v{GR+1}, s12, v{GR}", f"v_lshlrev_b32 v{GR}, 16, v{GR}", f"v_rcp_f32 v{GR+1}, v{GR+1}"]
    for k in range(10):
        x, dk, d = RX + k, RD + k, OWN[1] + 2 * k
        rc += [f"v_lshlrev_b32 v{d}, 16, v{x}", f"v_and_b32 v{d+1}, s12, v{x}",
               f"v_lshlrev_b32 v4, 16, v{dk}", f"v_and_b32 v5, s12, v{dk}",
               f"v_add_f32 v6, v{d}, v{GR}", f"v_add_f32 v7, v{d+1}, v{GR}",
               f"v_mul_f32 v4, v4, v{GR+1}", f"v_mul_f32 v5, v5, v{GR+1}",
               f"v_fmac_f32 v{d}, v6, v4", f"v_fmac_f32 v{d+1}, v7, v5"]
    n4 = (len(rc) + 3) // 4
    for k in range(4):
        side[5 + k] += rc[k * n4:(k + 1) * n4]
    def rdc(j):
        t = TM + 12 * (j & 1)
        return [("lg", ("rr", j), f"ds_read_b128 {vr(t+4*(al-1),4)}, v{vLR} offset:{(al-1)*5120+1024*j}") for al in range(1, 4)]
    red = [[lambda: a.waitall_lg(), "s_barrier"]] + rdc(0) + rdc(1)
    for j in range(5):
        t = TM + 12 * (j & 1)
        red.append(("lgwait", ("rr", j)))
        for e in range(4):
            d = OWN[0] + 4 * j + e
            red += [f"v_add_f32 v{t+e}, v{t+e}, v{t+4+e}", f"v_add_f32 v{d}, v{d}, v{t+8+e}"]
        for e in range(4):
            d = OWN[0] + 4 * j + e
            red.append(f"v_add_f32 v{d}, v{d}, v{t+e}")
        if j + 2 < 5:
            red += rdc(j + 2)
        for e in range(4):
            d = OWN[0] + 4 * j + e
            red.append(f"v_bfi_b32 v{d}, v253, s{57+e}, v{d}")
        if j == 4:
            red.append(f"s_add_u32 s{sXO}, s{sXO}, 4096")
        red.append(("vm", "pst", f"buffer_store_dwordx4 {vr(OWN[0]+4*j,4)}, v2, {srdr(rP)}, s{sXO} offen offset:{1024*(j%4)} {SC}"))
    red += [f"v_add_u32 v{v}, 61440, v{v}" for v in list(vLW) + [vLR]]
    n3 = (len(red) + 2) // 3
    for k in range(3):
        side[12 + k] += red[k * n3:(k + 1) * n3]
    pld = [f"buffer_load_dwordx4 {vr(PP+4*j,4)}, v2, {srdr(rP)}, s{sST if j < 4 else 61} offen offset:{1024*(j%4)} {SC}" for j in range(5)]
    a(f"s_add_u32 s61, s{sST}, 4096")
    side[20] += [("vm", "pld", x) for x in pld]
    pchk = [f"v_xor_b32 v{PP+k}, s{57+(k&3)}, v{PP+k}" for k in range(20)]
    pchk += [f"v_or3_b32 v4, v{PP}, v{PP+1}, v{PP+2}"] + [f"v_or3_b32 v4, v4, v{PP+k}, v{PP+k+1}" for k in range(3, 19, 2)]
    pchk += [f"v_or_b32 v4, v4, v{PP+19}", "v_and_b32 v4, v4, v253", "v_cmp_ne_u32 vcc, 0, v4"]

    issued = D2

    def more_loads(upto, fixed, gap):
        nonlocal issued
        mem = []
        while issued < min(upto, 24):
            nx = issued
            it = a_load(nx)
            if nx in polls:
                it[0] = [(lambda n: (lambda: async_check(a, ("poll", n), [pl(polls[n])], pc, f"p{n}")))(nx)] + it[0]
            if nx == 12:
                it[0] = it[0][:1] + [f"v_add_u32 v{v}, s11, v{v}" for v in vA] + it[0][1:]
            mem += it
            if nx + 2 in polls:
                mem.append(("vm", ("poll", nx + 2), pl(polls[nx + 2])))
            issued += 1
        return mem

    LOOK = {gs: int(os.environ.get("LK1", "4")) for gs in range(12)}
    LOOK.update({gs: 6 for gs in range(12, 24)})

    def plain_step(gs):
        a.vmwait(("a", gs), ("bg", gs) if gs < 12 else None)
        if os.environ.get("PST") and gs in (0, 2, 4, 6, 8):
            dstamp(a, 1 + gs // 2, RST)
        mem = more_loads(gs + LOOK[gs] + 1, None, None)
        gaps = schedule(20, {}, 2, mem, (0, 19), side[gs], (2 if gs == 12 else 1, 19))
        order = (0, 1, 2, 3)
        for m in range(20):
            a(mf(gs, order[m // 5], m % 5))
            for x in gaps[m]:
                a.item(x)

    def triple(g0, extra):
        a.vmwait(("a", g0 + 2), ("bg", 11) if g0 < 12 else None)
        mem = more_loads(g0 + NRG, None, None)
        fixed = {}
        for n, al in enumerate((1, 2, 3)):
            for j, x in enumerate(wr(al)):
                fixed.setdefault(15 * (n + 1) + 4 + 2 * j, []).append(x)
        gaps = schedule(60, fixed, 2, mem, (0, 59), extra, (20, 59))
        seq = [(gs, al, j) for al in (1, 2, 3, 0) for gs in range(g0, g0 + 3) for j in range(5)]
        for m, t in enumerate(seq):
            a(mf(*t))
            for x in gaps[m]:
                a.item(x)

    for gs in range(9):
        plain_step(gs)
    triple(9, [])
    dstamp(a, 11)
    for gs in range(12, 21):
        plain_step(gs)
    dstamp(a, 12)
    slow, back = a.label("pps"), a.label("ppb")
    triple(21, [("wait", "pld")] + pchk[:-1])
    dstamp(a, 13)
    a.waitall_lg()
    a("s_barrier")
    for j in range(5):
        for al in range(1, 4):
            a.lg(("rr", j), f"ds_read_b128 {vr(accr(1, al, j),4)}, v{vLR} offset:{(al-1)*5120+1024*j}")
    a(pchk[-1])
    a(f"s_cbranch_vccnz {slow}")
    a(f"{back}:")
    DEFERRED.append((slow, back, pld, pchk, "pp"))
    O = OWN[1]
    for k in range(0, 20, 2):
        a(f"v_pk_add_f32 {vr(O+k,2)}, {vr(O+k,2)}, {vr(PP+k,2)}")
    for j in range(5):
        a.lgwait(("rr", j))
        for e in range(0, 4, 2):
            d, t = O + 4 * j + e, SH + 4 * j + e
            a(f"v_pk_add_f32 {vr(t,2)}, {vr(t,2)}, {vr(t+20,2)}")
            a(f"v_pk_add_f32 {vr(d,2)}, {vr(d,2)}, {vr(t+40,2)}")
        for e in range(0, 4, 2):
            d, t = O + 4 * j + e, SH + 4 * j + e
            a(f"v_pk_add_f32 {vr(d,2)}, {vr(d,2)}, {vr(t,2)}")
        a(f"buffer_store_dwordx4 {vr(O+4*j,4)}, v{vOUT}, {srdr(rO)}, 0 offen offset:{64*j} sc1")
    if DIAG:
        a("s_waitcnt vmcnt(0)")
        dstamp(a, 14)
        a("v_writelane_b32 v15, s98, 0")
        dflush(a)
    a("s_endpgm")
    emit_deferred(a)
    a("L_end:")
    a("s_endpgm")


def decode_roles(a):
    l2 = a.label("dec")
    a(f"s_cmp_ge_u32 s{sXCD}, 6")
    a("s_cselect_b32 s18, 16, 8")
    a(f"s_cmp_eq_u32 s{sXCD}, 7")
    a(f"s_cselect_b32 s13, 8, s{sXCD}")
    a(f"s_lshr_b32 s19, s{sIDX}, 3")
    a(f"s_add_u32 s{sUNIT}, s13, s19")
    a(f"s_and_b32 s{sPART}, s{sIDX}, 7")
    a(f"s_mov_b32 s{sROLE}, 0")
    a(f"s_cmp_lt_u32 s{sIDX}, s18")
    a(f"s_cbranch_scc1 {l2}")
    a(f"s_sub_u32 s18, s{sIDX}, s18")
    a(f"s_mul_i32 s19, s18, 43")
    a("s_lshr_b32 s19, s19, 8")
    a("s_mul_i32 s13, s19, 6")
    a(f"s_sub_u32 s{sPART}, s18, s13")
    a(f"s_lshl_b32 s13, s{sXCD}, 2")
    a(f"s_lshl_b32 s18, s{sXCD}, 1")
    a("s_add_u32 s18, s18, 11")
    a("s_min_u32 s13, s13, s18")
    a(f"s_add_u32 s{sUNIT}, s13, s19")
    a(f"s_sub_u32 s18, 8, s{sXCD}")
    a("s_min_u32 s18, s18, 4")
    a("s_max_u32 s18, s18, 2")
    a(f"s_mov_b32 s{sROLE}, 1")
    a("s_cmp_lt_u32 s19, s18")
    a(f"s_cbranch_scc1 {l2}")
    a(f"s_mov_b32 s{sROLE}, 2")
    a(f"s_sub_u32 s{sPART}, 255, s2")
    a(f"{l2}:")


def p2_scalars(a):
    a(f"s_and_b32 s{sHALF}, s{sXCD}, 1")
    a(f"s_lshr_b32 s{sTILE}, s{sXCD}, 1")
    a(f"s_lshl_b32 s{sTILE}, s{sTILE}, 2")
    a(f"s_lshr_b32 s13, s{sIDX}, 3")
    a(f"s_add_u32 s{sTILE}, s{sTILE}, s13")
    a(f"s_and_b32 s{sNB}, s{sIDX}, 7")
    a(f"s_lshl_b32 s{sG1}, s{sTILE}, 1")
    a(f"s_lshl_b32 s13, s{sHALF}, 5")
    a(f"s_add_u32 s{sG1}, s{sG1}, s13")
    a(f"s_mul_i32 s16, s{sW}, 12")
    a("s_add_u32 s17, s16, 10")
    a(f"s_mul_i32 s18, s{sW}, 10")
    a("s_add_u32 s18, s18, 54")
    a(f"s_lshl_b32 s19, s{sW}, 1")
    a("s_add_u32 s19, s19, 47")
    a(f"s_cmp_eq_u32 s{sHALF}, 0")
    a("s_cselect_b32 s16, s16, s18")
    a("s_cselect_b32 s17, s17, s19")
    a(f"s_lshl_b32 s{sA1}, s16, 10")
    a(f"s_lshl_b32 s{sA2}, s17, 10")
    a(f"s_add_u32 s{sA3}, s{sA2}, 1024")
    a(f"s_cmp_eq_u32 s{sW}, 3")
    a(f"s_cselect_b32 s{sA3}, {OOB}, s{sA3}")
    a(f"s_mul_i32 s18, s{sNB}, 94")
    a("s_add_u32 s16, s16, s18")
    a("s_add_u32 s17, s17, s18")
    a(f"s_mul_i32 s{sB1}, s16, 5120")
    a(f"s_mul_i32 s{sB2}, s17, 5120")
    a(f"s_add_u32 s{sB3}, s{sB2}, 5120")
    a(f"s_cmp_eq_u32 s{sW}, 3")
    a(f"s_cselect_b32 s{sB3}, {OOB}, s{sB3}")
    a.srd(rWP, pWS, W2P_SZ, W2P_OFF)


def main(out):
    a = Asm()
    name = NAME + "_kernel"
    gen(a, name)
    a.L = hazard.fix(a.L, verbose=os.environ.get("V") == "1")
    probs = hazard.check(a.L)
    for p in probs[:20]:
        print("HAZARD need %d have %d:\n   %s\n   %s" % (p[2], p[3], p[0], p[1]))
    txt = HEADER
    txt += "; @launch grid=(256,1,1) block=(256,1,1) lds=163840\n"
    txt += '.amdgcn_target "amdgcn-amd-amdhsa--gfx950"\n.text\n'
    txt += a.text()
    txt += '.section .rodata,"a"\n'
    txt += kd(name, 512, 256)
    open(out, "w").write(txt)
    print("wrote", out, len(txt), "bytes;", len(probs), "hazards")


if __name__ == "__main__":
    main(sys.argv[1] if len(sys.argv) > 1 else f"cdna_kernels/{NAME}.s")
```
